```python
import torch

def _softmax(x, axis=-1):
    return torch.softmax(x, dim=axis)
def _gelu(x):
    return torch.nn.functional.gelu(x, approximate="tanh")
def _silu(x):
    return torch.nn.functional.silu(x)
def _sigmoid(x):
    return torch.sigmoid(x)
def _layernorm(x, axis=-1, eps=1e-5):
    m = x.mean(dim=axis, keepdim=True)
    v = x.var(dim=axis, keepdim=True, unbiased=False)
    return (x - m) / torch.sqrt(v + eps)
def _scatter_add(tgt, idx, src, axis=0):
    return tgt.clone().index_add_(axis, idx, src)
def _segment_sum(src, seg, n):
    out = torch.zeros((n,) + src.shape[1:], dtype=src.dtype)
    return out.index_add_(0, seg, src)
def _pad(x, pw):
    flat = tuple(v for pair in reversed(pw) for v in pair)
    return torch.nn.functional.pad(x, flat)

kernel_name = 'sequential_preLN__linear_attn_block__geglu_ffn__prompt'

def setup_inputs():

    _w = (lambda a: (lambda t: t.to(torch.bfloat16) if t.is_floating_point() else t)(torch.as_tensor(a)))
    def _A_setup():
        B, S, D = 1, 2048, 1024
        return {
            "x": _w((lambda *s: torch.randn(*s, dtype=torch.bfloat16) * 0.05)(B, S, D)),
            "wqkv": _w((lambda *s: torch.randn(*s, dtype=torch.bfloat16) * 0.05)(D, 3 * D)),
            "wo": _w((lambda *s: torch.randn(*s, dtype=torch.bfloat16) * 0.05)(D, D)),
        }
    _A_in = _A_setup()

    def _B_setup():
        B, S, D, F = 1, 2048, 1024, 3584
        return {
            "x": _w((lambda *s: torch.randn(*s, dtype=torch.bfloat16) * 0.05)(B, S, D)),
            "w_gate": _w((lambda *s: torch.randn(*s, dtype=torch.bfloat16) * 0.05)(D, F)),
            "w_up": _w((lambda *s: torch.randn(*s, dtype=torch.bfloat16) * 0.05)(D, F)),
            "w_down": _w((lambda *s: torch.randn(*s, dtype=torch.bfloat16) * 0.05)(F, D)),
        }
    _B_in = _B_setup()

    return {
        "A_x": _A_in["x"],
        "A_wqkv": _A_in["wqkv"],
        "A_wo": _A_in["wo"],
        "B_x": _B_in["x"],
        "B_w_gate": _B_in["w_gate"],
        "B_w_up": _B_in["w_up"],
        "B_w_down": _B_in["w_down"],
    }

def reference(A_x, A_wqkv, A_wo, B_x, B_w_gate, B_w_up, B_w_down):
    def _A_ref(x, wqkv, wo):
        B, S, D = x.shape
        H = 32; Dh = D // H
        qkv = (lambda x, *d: x.permute(*d))((x @ wqkv).reshape(B, S, 3, H, Dh), 2, 0, 3, 1, 4)
        q, k, v = qkv[0], qkv[1], qkv[2]
        phi = lambda t: torch.where(t > 0, t + 1, torch.exp(t)) + 1e-6
        pq, pk = phi(q), phi(k)
        kv = torch.einsum("bhsd,bhse->bhde", pk, v)
        z = torch.einsum("bhsd->bhd", pk)
        num = torch.einsum("bhqd,bhde->bhqe", pq, kv)
        den = torch.einsum("bhqd,bhd->bhq", pq, z)[..., None] + 1e-6
        o = num / den
        return (lambda x, *d: x.permute(*d))(o, 0, 2, 1, 3).reshape(B, S, D) @ wo

    def _B_ref(x, w_gate, w_up, w_down):
        return (_gelu(x @ w_gate) * (x @ w_up)) @ w_down

    x = A_x
    h = x + _A_ref(_layernorm(x, axis=-1), A_wqkv, A_wo)
    h2 = h + _B_ref(_layernorm(h, axis=-1), B_w_gate, B_w_up, B_w_down)
    return h2
```

```python
import sys, struct

NAME = "sequential_preLN__linear_attn_block__geglu_ffn__prompt"
MB = 1 << 20
WS_XN = 0 * MB
WS_PQ = 8 * MB
WS_KVP = 12 * MB
WS_ZP = 14 * MB
WS_O = 16 * MB
WS_H = 20 * MB
WS_ST = 24 * MB
WS_ACT = 32 * MB
WS_BYTES = 48 * MB
OOB = 0x7f000000

def f2u(x):
    return struct.unpack("<I", struct.pack("<f", x))[0]

class G:
    def __init__(self):
        self.lines = []
        self.uid = 0
    def e(self, s):
        self.lines.append("    " + s)
    def label(self, s):
        self.lines.append(s + ":")
    def raw(self, s):
        self.lines.append(s)
    def newlabel(self, p="L"):
        self.uid += 1
        return f"{p}_{self.uid}"
    def text(self):
        return "\n".join(self.lines) + "\n"

def vr(b, n=1):
    return f"v{b}" if n == 1 else f"v[{b}:{b+n-1}]"
def sr(b, n=1):
    return f"s{b}" if n == 1 else f"s[{b}:{b+n-1}]"

class Alloc:
    def __init__(self, start=0, limit=256):
        self.n = start; self.limit = limit
    def get(self, cnt=1, align=1):
        self.n = (self.n + align - 1) // align * align
        b = self.n; self.n += cnt
        assert self.n <= self.limit, f"out of regs {self.n}"
        return b

def kernel_begin(g, name):
    g.raw(f".globl {name}")
    g.raw(".p2align 8")
    g.raw(f".type {name},@function")
    g.label(name)

def kernel_desc(name, nv, ns=96):
    nv = max(nv, 8)
    acc = (nv + 3) // 4 * 4
    return f""".amdhsa_kernel {name}
  .amdhsa_next_free_vgpr {nv}
  .amdhsa_next_free_sgpr {ns}
  .amdhsa_accum_offset {acc}
  .amdhsa_group_segment_fixed_size 0
  .amdhsa_kernarg_size 80
  .amdhsa_user_sgpr_count 2
  .amdhsa_user_sgpr_kernarg_segment_ptr 1
  .amdhsa_system_sgpr_workgroup_id_x 1
.end_amdhsa_kernel
"""

def make_srd(g, d, base, nbytes, add=0):
    if add:
        g.e(f"s_add_u32 s{d}, s{base}, {add}")
        g.e(f"s_addc_u32 s{d+1}, s{base+1}, 0")
    else:
        g.e(f"s_mov_b32 s{d}, s{base}")
        g.e(f"s_mov_b32 s{d+1}, s{base+1}")
    g.e(f"s_mov_b32 s{d+2}, {nbytes}")
    g.e(f"s_mov_b32 s{d+3}, 0x00020000")

class Stream:
    def __init__(self):
        self.items = []
        self.vm = []; self.lg = []
        self.vm_done = 0; self.lg_done = 0
    def i(self, text):
        self.items.append(('i', text))
    def vmop(self, text, oid):
        self.items.append(('i', text)); self.vm.append(oid)
    def lgop(self, text, oid):
        self.items.append(('i', text)); self.lg.append(oid)
    def need(self, kind, oids):
        lst = self.vm if kind == 'vm' else self.lg
        done = self.vm_done if kind == 'vm' else self.lg_done
        idx = max(lst.index(o) for o in oids)
        if idx < done:
            self.items.append(['w', kind, None]); return
        n = len(lst) - 1 - idx
        cap = 63 if kind == 'vm' else 15
        n = min(n, cap)
        self.items.append(['w', kind, n])
        if kind == 'vm': self.vm_done = len(lst) - n
        else: self.lg_done = len(lst) - n

def gemm_core(g, c):
    RB, CB, D, NA, NS, KT = c['RB'], c['CB'], c['D'], c['NA'], c['NS'], c['KT']
    norm = c.get('norm', False)
    acc = c['acc']; araw = c['araw']; bfr = c['bfr']; anorm = c.get('anorm')
    vA = c['vA']; vBl = c['vBl']; vBrd = c['vBrd']
    srdA = c['srdA']; srdB = c['srdB']
    sA, sAe, sB, sBe, sW, sWw, sR, sCnt = c['sregs']
    stage = c['stage']; tileB = c['tileB']
    dma = c['dma']
    sWave = c['sWave']
    swap = c['swap']; b_imm = c['b_imm']
    bar_cb = c.get('bar_cb', min(1, CB - 1))
    tmp = c.get('tmp')
    U = NA
    assert KT % U == 0
    V = max(NA, NS - 1)
    PB = NS - 1

    def a_reg(t, kk, rb): return araw[((t % NA) * 4 + kk) * RB + rb]
    def b_reg(s, cb): return bfr[(s % D) * CB + cb]
    def n_reg(s, rb): return anorm[(s & 1) * RB + rb]

    def gen_tile(st, t):
        real = t >= 0
        st.i(f"s_cmp_lt_u32 s{sA}, {KT*4096}")
        st.i(f"s_cselect_b32 s{sAe}, s{sA}, {OOB}")
        st.i(f"s_add_u32 s{sA}, s{sA}, 4096")
        barstep = 4 - D
        dma_pending = []
        for kk in range(4):
            s = 4 * t + kk
            fill = []
            if norm:
                ps = s
            else:
                ps = s - 1
            pt, pk = divmod(ps, 4)
            for rb in range(RB):
                tgt = pt + NA
                if pt == t:
                    so = f"s{sAe}"
                else:
                    so = f"s{c['sAprev']}"
                def f(rb=rb, pt=pt, pk=pk, tgt=tgt, so=so):
                    st.vmop(f"buffer_load_dwordx4 {vr(a_reg(pt,pk,rb),4)}, v{vA[rb]}, {sr(srdA,4)}, {so} offen offset:{pk*1024}", ('A', tgt, pk, rb))
                fill.append(f)
            if kk == 0 and not norm:
                pass
            nfill = []
            if norm and s + 1 >= 0:
                nt_, nk_ = divmod(s + 1, 4)
                for rb in range(RB):
                    src = a_reg(nt_, nk_, rb); dst = n_reg(s + 1, rb)
                    rs, ms = c['nrm'][rb]
                    for d in range(4):
                        t0, t1 = tmp[(d & 1) * 2], tmp[(d & 1) * 2 + 1]
                        first = (d == 0)
                        def f(src=src, dst=dst, d=d, t0=t0, t1=t1, rs=rs, ms=ms, first=first, nt_=nt_, nk_=nk_, rb=rb):
                            if first and (nt_, nk_, rb) == (0, 0, 0) and c.get('hook_norm'):
                                st.i(f"s_waitcnt vmcnt({min(63, len(st.vm))})")
                                c['hook_norm'](st)
                            if first: st.need('vm', [('A', nt_, nk_, rb)])
                            st.i(f"v_lshlrev_b32 v{t0}, 16, v{src+d}")
                            st.i(f"v_and_b32 v{t1}, 0xffff0000, v{src+d}")
                            st.i(f"v_fma_f32 v{t0}, v{t0}, v{rs}, v{ms}")
                            st.i(f"v_fma_f32 v{t1}, v{t1}, v{rs}, v{ms}")
                            st.i(f"v_cvt_pk_bf16_f32 v{dst+d}, v{t0}, v{t1}")
                        nfill.append(f)
            deferred = []
            def issue_reads(ts, cb):
                tt, tk = divmod(ts, 4)
                for q in range(2):
                    st.lgop(f"ds_read_b64_tr_b16 {vr(b_reg(ts,cb)+2*q,2)}, v{vBrd} offset:{b_imm(tk,cb,q)}", ('R', ts, cb, q))
            bar_done = kk > barstep
            queue = fill + nfill if not norm else fill + nfill
            per = -(-len(queue) // CB) if queue else 0
            for cb in range(CB):
                if real:
                    st.need('lg', [('R', s, cb, 0), ('R', s, cb, 1)])
                    if cb == 0 and not norm:
                        st.need('vm', [('A', t, kk, rb) for rb in range(RB)])
                    for rb in range(RB):
                        a = n_reg(s, rb) if norm else a_reg(t, kk, rb)
                        b = b_reg(s, cb)
                        x, y = (b, a) if swap[cb] else (a, b)
                        st.i(f"v_mfma_f32_32x32x16_bf16 {vr(acc[rb][cb],16)}, {vr(x,4)}, {vr(y,4)}, {vr(acc[rb][cb],16)}")
                if kk == barstep and cb == bar_cb and t >= -1:
                    st.need('vm', [('D', t + 1, i) for i in range(len(dma))])
                    st.i("s_barrier")
                    st.i(f"s_add_u32 s{sR}, s{sR}, {stage}")
                    st.i(f"s_cmp_lt_u32 s{sR}, {NS*stage}")
                    st.i(f"s_cselect_b32 s{sR}, s{sR}, 0")
                    st.i(f"v_add_u32 v{vBrd}, s{sR}, v{vBl}")
                if kk == barstep and cb == bar_cb:
                    bar_done = True
                    st.i(f"s_cmp_lt_u32 s{sB}, {KT*tileB}")
                    st.i(f"s_cselect_b32 s{sBe}, s{sB}, {OOB}")
                    st.i(f"s_add_u32 s{sB}, s{sB}, {tileB}")
                    st.i(f"s_add_u32 s{sWw}, s{sW}, s{sWave}")
                    st.i(f"s_add_u32 s{sW}, s{sW}, {stage}")
                    st.i(f"s_cmp_lt_u32 s{sW}, {NS*stage}")
                    st.i(f"s_cselect_b32 s{sW}, s{sW}, 0")
                    c['_dmaq'] = [(t + PB, i) for i in range(len(dma))]
                    if (s + D) >= 0:
                        for dcb in deferred: issue_reads(s + D, dcb)
                    deferred = []
                if s + D >= 0:
                    crosses = (kk + D) >= 4
                    if crosses and not bar_done:
                        deferred.append(cb)
                    else:
                        issue_reads(s + D, cb)
                for _ in range(per):
                    if queue: queue.pop(0)()
                if c.get('_dmaq'):
                    tt, i = c['_dmaq'].pop(0)
                    vo, lc, half = dma[i]
                    st.i(f"s_add_u32 m0, s{sWw}, {lc}")
                    if half: st.i("s_mov_b32 exec_hi, 0")
                    else: st.i("s_nop 0")
                    st.vmop(f"buffer_load_dwordx4 v{vo}, {sr(srdB,4)}, s{sBe} offen lds", ('D', tt, i))
                    if half: st.i("s_mov_b32 exec_hi, -1")
            while queue: queue.pop(0)()
            if kk == 3:
                st.i(f"s_mov_b32 s{c['sAprev']}, s{sAe}")

    g.e(f"s_mov_b32 s{sA}, {(NA - V) * 4096 & 0xffffffff}")
    g.e(f"s_mov_b32 s{sB}, {((PB - V) * tileB) & 0xffffffff}")
    g.e(f"s_mov_b32 s{sW}, {((PB - V) % NS) * stage}")
    g.e(f"s_mov_b32 s{sR}, {(NS - 1) * stage}")
    g.e(f"s_mov_b32 s{c['sAprev']}, {OOB}")
    g.e(f"s_mov_b32 s{sCnt}, {KT // U}")
    st = Stream()
    c['_dmaq'] = []
    for t in range(-V, 0):
        gen_tile(st, t)
    n_pro = len(st.items)
    for t in range(0, U): gen_tile(st, t)
    n_b1 = len(st.items)
    for t in range(U, 2 * U): gen_tile(st, t)
    n_b2 = len(st.items)
    b1 = st.items[n_pro:n_b1]; b2 = st.items[n_b1:n_b2]
    assert len(b1) == len(b2), (len(b1), len(b2))
    for x, y in zip(b1, b2):
        assert x[0] == y[0]
        if x[0] == 'w':
            vals = [v for v in (x[2], y[2]) if v is not None]
            x[2] = min(vals) if vals else None
        else:
            assert x[1] == y[1], (x[1], y[1])
    def out(items):
        for it in items:
            if it[0] == 'i': g.e(it[1])
            elif it[2] is not None:
                g.e(f"s_waitcnt {'vmcnt' if it[1]=='vm' else 'lgkmcnt'}({it[2]})")
    out(st.items[:n_pro])
    if c.get('pre_loop'): c['pre_loop']()
    L = g.newlabel("Lloop")
    g.label(L)
    out(b1)
    g.e(f"s_sub_u32 s{sCnt}, s{sCnt}, 1")
    g.e(f"s_cmp_lg_u32 s{sCnt}, 0")
    g.e(f"s_cbranch_scc1 {L}")
    g.e("s_waitcnt vmcnt(0) lgkmcnt(0)")
    g.e("s_nop 15")

LOG2E = 1.4426950408889634

def common_entry(g, nwg, vLane, sWv, done):
    g.e(f"s_cmp_ge_u32 s2, {nwg}")
    g.e(f"s_cbranch_scc1 {done}")
    g.e(f"v_and_b32 v{vLane}, 63, v0")
    g.e(f"v_lshrrev_b32 v1, 6, v0")
    g.e("s_nop 0")
    g.e(f"v_readfirstlane_b32 s{sWv}, v1")

def emit_vBl_std(g, vBl, vLane, t):
    g.e(f"v_lshrrev_b32 v{vBl}, 5, v{vLane}")
    g.e(f"v_lshlrev_b32 v{vBl}, 8, v{vBl}")
    g.e(f"v_bfe_u32 v{t}, v{vLane}, 2, 2")
    g.e(f"v_lshl_add_u32 v{vBl}, v{t}, 6, v{vBl}")
    g.e(f"v_bfe_u32 v{t}, v{vLane}, 4, 1")
    g.e(f"v_lshl_add_u32 v{vBl}, v{t}, 5, v{vBl}")
    g.e(f"v_and_b32 v{t}, 3, v{vLane}")
    g.e(f"v_lshl_add_u32 v{vBl}, v{t}, 3, v{vBl}")

def emit_dma_lane_std(g, vD, vLane, t, ldb, sT):
    g.e(f"v_bfe_u32 v{t}, v{vLane}, 2, 3")
    g.e(f"s_mov_b32 s{sT}, {ldb}")
    g.e(f"v_mul_lo_u32 v{vD}, v{t}, s{sT}")
    g.e(f"v_lshrrev_b32 v{t}, 5, v{vLane}")
    g.e(f"v_lshl_add_u32 v{vD}, v{t}, 6, v{vD}")
    g.e(f"v_and_b32 v{t}, 3, v{vLane}")
    g.e(f"v_lshl_add_u32 v{vD}, v{t}, 4, v{vD}")

def zero_regs(g, base, n):
    for i in range(n): g.e(f"v_mov_b32 v{base+i}, 0")

def k0(g):
    name = "k0_ln_kernel"
    kernel_begin(g, name)
    done = "k0_done"
    sWv = 3
    common_entry(g, 256, 2, sWv, done)
    g.e("s_load_dwordx2 s[4:5], s[0:1], 0")
    g.e("s_load_dwordx2 s[6:7], s[0:1], 72")
    g.e("v_and_b32 v3, 7, v2")
    g.e("v_lshrrev_b32 v4, 3, v2")
    g.e("s_lshl_b32 s16, s2, 3")
    g.e("v_add_u32 v5, s16, v3")
    g.e("v_lshlrev_b32 v5, 11, v5")
    g.e("s_lshl_b32 s17, s3, 4")
    g.e("v_add_u32 v6, s17, v4")
    g.e("v_lshl_add_u32 v5, v6, 5, v5")
    g.e("s_waitcnt lgkmcnt(0)")
    make_srd(g, 8, 4, 4 * MB)
    make_srd(g, 12, 6, 4 * MB, WS_XN)
    g.e("buffer_load_dwordx4 v[8:11], v5, s[8:11], 0 offen")
    g.e("buffer_load_dwordx4 v[12:15], v5, s[8:11], 0 offen offset:16")
    g.e("buffer_load_dwordx4 v[16:19], v5, s[8:11], 0 offen offset:256")
    g.e("buffer_load_dwordx4 v[20:23], v5, s[8:11], 0 offen offset:272")
    g.e("s_lshr_b32 s18, s2, 2")
    g.e("s_lshl_b32 s18, s18, 16")
    g.e("s_and_b32 s19, s2, 3")
    g.e("s_lshl_b32 s19, s19, 7")
    g.e("s_add_u32 s18, s18, s19")
    g.e("v_lshlrev_b32 v7, 10, v6")
    g.e("v_lshl_add_u32 v7, v3, 4, v7")
    g.e("v_add_u32 v7, s18, v7")
    g.e("v_mov_b32 v24, 0")
    g.e("v_mov_b32 v25, 0")
    g.e("s_waitcnt vmcnt(0)")
    for d in range(16):
        g.e(f"v_lshlrev_b32 v{32+2*d}, 16, v{8+d}")
        g.e(f"v_and_b32 v{33+2*d}, 0xffff0000, v{8+d}")
    for i in range(32):
        g.e(f"v_add_f32 v24, v24, v{32+i}")
        g.e(f"v_fma_f32 v25, v{32+i}, v{32+i}, v25")
    g.e("s_nop 1")
    g.e("v_add_f32_dpp v24, v24, v24 row_ror:8 row_mask:0xf bank_mask:0xf")
    g.e("v_add_f32_dpp v25, v25, v25 row_ror:8 row_mask:0xf bank_mask:0xf")
    for op in ("v_permlane16_swap_b32", "v_permlane32_swap_b32"):
        g.e("v_mov_b32 v26, v24")
        g.e("v_mov_b32 v27, v25")
        g.e("s_nop 1")
        g.e(f"{op} v24, v26")
        g.e(f"{op} v25, v27")
        g.e("s_nop 1")
        g.e("v_add_f32 v24, v24, v26")
        g.e("v_add_f32 v25, v25, v27")
    g.e("s_lshl_b32 s20, s3, 6")
    g.e("v_lshlrev_b32 v26, 3, v3")
    g.e("v_add_u32 v27, s20, v26")
    g.e("ds_write_b64 v27, v[24:25]")
    g.e("s_waitcnt lgkmcnt(0)")
    g.e("s_barrier")
    g.e("ds_read_b64 v[8:9], v26")
    g.e("ds_read_b64 v[10:11], v26 offset:64")
    g.e("ds_read_b64 v[12:13], v26 offset:128")
    g.e("ds_read_b64 v[14:15], v26 offset:192")
    g.e("s_waitcnt lgkmcnt(0)")
    g.e("v_add_f32 v8, v8, v10")
    g.e("v_add_f32 v9, v9, v11")
    g.e("v_add_f32 v12, v12, v14")
    g.e("v_add_f32 v13, v13, v15")
    g.e("v_add_f32 v8, v8, v12")
    g.e("v_add_f32 v9, v9, v13")
    g.e(f"v_mul_f32 v8, 0x{f2u(1/1024):08x}, v8")
    g.e(f"v_mul_f32 v9, 0x{f2u(1/1024):08x}, v9")
    g.e("v_fma_f32 v9, -v8, v8, v9")
    g.e("v_max_f32 v9, 0, v9")
    g.e(f"v_add_f32 v9, 0x{f2u(1e-5):08x}, v9")
    g.e("v_rsq_f32 v9, v9")
    g.e("s_nop 0")
    g.e("v_mul_f32 v8, v8, v9")
    for i in range(32):
        g.e(f"v_fma_f32 v{32+i}, v{32+i}, v9, -v8")
    for grp in range(2):
        b = 32 + 16 * grp; o = 8 + 8 * grp
        for k, e in enumerate((0, 2, 8, 10, 4, 6, 12, 14)):
            g.e(f"v_cvt_pk_bf16_f32 v{o+k}, v{b+e}, v{b+e+1}")
    g.e("s_mov_b32 s21, 8192")
    g.e("buffer_store_dwordx4 v[8:11], v7, s[12:15], 0 offen")
    g.e("buffer_store_dwordx4 v[12:15], v7, s[12:15], 0 offen offset:512")
    g.e("buffer_store_dwordx4 v[16:19], v7, s[12:15], s21 offen")
    g.e("buffer_store_dwordx4 v[20:23], v7, s[12:15], s21 offen offset:512")
    g.label(done)
    g.e("s_endpgm")
    return name, 64, (256, 256, 256)

def emit_phi(g, r, t):
    g.e(f"v_mul_f32 v{t}, 0x{f2u(LOG2E):08x}, v{r}")
    g.e(f"v_min_f32 v{t}, 0, v{t}")
    g.e(f"v_exp_f32 v{t}, v{t}")
    g.e(f"v_add_f32 v{r}, 0x{f2u(1e-6):08x}, v{r}")
    g.e(f"v_max_f32 v{r}, 0x{f2u(1e-6):08x}, v{r}")
    g.e(f"v_add_f32 v{r}, v{r}, v{t}")

def k1(g, NA=4, NS=5):
    name = "k1_qkv_kernel"
    kernel_begin(g, name)
    done = "k1_done"
    va = Alloc(4)
    vLane = 2; vT = 3
    sWv = 3
    common_entry(g, 256, vLane, sWv, done)
    g.e("s_load_dwordx2 s[4:5], s[0:1], 8")
    g.e("s_load_dwordx2 s[6:7], s[0:1], 72")
    sMt, sJ = 20, 21
    g.e("s_and_b32 s16, s2, 7")
    g.e("s_lshr_b32 s17, s2, 3")
    g.e("s_and_b32 s18, s16, 1")
    g.e("s_lshl_b32 s18, s18, 3")
    g.e("s_and_b32 s19, s17, 7")
    g.e(f"s_add_u32 s{sMt}, s18, s19")
    g.e("s_lshr_b32 s18, s16, 1")
    g.e("s_lshl_b32 s18, s18, 2")
    g.e("s_lshr_b32 s19, s17, 3")
    g.e(f"s_add_u32 s{sJ}, s18, s19")
    RB, CB, D = 1, 6, 1
    acc = [[va.get(16, 4) for cb in range(CB)]]
    araw = [va.get(4, 4) for _ in range(NA * 4 * RB)]
    bfr = [va.get(4, 4) for _ in range(D * CB)]
    vA = [va.get()]; vBl = va.get(); vBrd = va.get()
    vD = [va.get() for _ in range(6)]
    sRbg = 22
    g.e(f"s_lshl_b32 s{sRbg}, s{sMt}, 2")
    g.e(f"s_add_u32 s{sRbg}, s{sRbg}, s{sWv}")
    g.e(f"s_lshl_b32 s16, s{sRbg}, 16")
    g.e(f"v_lshlrev_b32 v{vA[0]}, 4, v{vLane}")
    g.e(f"v_add_u32 v{vA[0]}, s16, v{vA[0]}")
    emit_vBl_std(g, vBl, vLane, vT)
    emit_dma_lane_std(g, vD[0], vLane, vT, 6144, 16)
    g.e(f"s_mul_i32 s16, s{sWv}, {16*6144}")
    g.e(f"s_lshl_b32 s17, s{sJ}, 7")
    g.e("s_add_u32 s16, s16, s17")
    g.e(f"v_add_u32 v{vD[0]}, s16, v{vD[0]}")
    dma = []
    for kbs in range(2):
        for seg in range(3):
            i = kbs * 3 + seg
            if i: g.e(f"v_add_u32 v{vD[i]}, {kbs*8*6144 + seg*2048}, v{vD[0]}")
            dma.append((vD[i], (kbs * 3 + seg) * 1024, False))
    sWave = 23
    g.e(f"s_mul_i32 s{sWave}, s{sWv}, 6144")
    g.e("s_waitcnt lgkmcnt(0)")
    make_srd(g, 8, 6, 4 * MB, WS_XN)
    make_srd(g, 12, 4, 1024 * 6144)
    zero_regs(g, acc[0][0], 96)
    c = dict(RB=RB, CB=CB, D=D, NA=NA, NS=NS, KT=16, acc=acc, araw=araw, bfr=bfr, vA=vA, vBl=vBl, vBrd=vBrd,
             srdA=8, srdB=12, sregs=(24, 25, 26, 27, 28, 29, 30, 31), sAprev=32, stage=24576, tileB=64 * 6144,
             dma=dma, sWave=sWave, swap=[1, 1, 0, 0, 0, 0],
             b_imm=lambda kk, cb, q: ((2 * kk + q) * 3 + (cb >> 1)) * 1024 + (cb & 1) * 512)
    gemm_core(g, c)
    make_srd(g, 36, 6, 4 * MB, WS_PQ)
    make_srd(g, 40, 6, 2 * MB, WS_KVP)
    make_srd(g, 44, 6, 64 * 1024, WS_ZP)
    ep = Alloc(araw[0])
    t0 = ep.get(4)
    for cb in range(4):
        for i in range(16):
            emit_phi(g, acc[0][cb] + i, t0 + (i & 3))
    pk = [ep.get(8, 4) for _ in range(6)]
    for cb in range(6):
        for i in range(8):
            g.e(f"v_cvt_pk_bf16_f32 v{pk[cb]+i}, v{acc[0][cb]+2*i}, v{acc[0][cb]+2*i+1}")
    g.e(f"s_lshl_b32 s16, s{sJ}, 12")
    for cb in range(2):
        for s in range(2):
            g.e(f"buffer_store_dwordx4 {vr(pk[cb]+4*s,4)}, v{vA[0]}, s[36:39], s16 offen offset:{(2*cb+s)*1024}")
    ones = ep.get(4, 4)
    for i in range(4): g.e(f"v_mov_b32 v{ones+i}, 0x3f803f80")
    kvz = [acc[0][0], acc[0][1], acc[0][2], acc[0][3]]
    zero_regs(g, kvz[0], 64)
    g.e("s_nop 1")
    for hh in range(2):
        for s in range(2):
            g.e(f"v_mfma_f32_32x32x16_bf16 {vr(kvz[hh],16)}, {vr(pk[2+hh]+4*s,4)}, {vr(pk[4+hh]+4*s,4)}, {vr(kvz[hh],16)}")
            g.e(f"v_mfma_f32_32x32x16_bf16 {vr(kvz[2+hh],16)}, {vr(pk[2+hh]+4*s,4)}, {vr(ones,4)}, {vr(kvz[2+hh],16)}")
    g.e("s_barrier")
    g.e("s_nop 15")
    vL = ep.get(); vL2 = ep.get()
    g.e(f"v_lshlrev_b32 v{vL}, 4, v{vLane}")
    g.e(f"s_lshl_b32 s16, s{sWv}, 14")
    g.e(f"v_add_u32 v{vL2}, s16, v{vL}")
    for it in range(4):
        for q in range(4):
            g.e(f"ds_write_b128 v{vL2}, {vr(kvz[it]+4*q,4)} offset:{it*4096+q*1024}")
    g.e("s_waitcnt lgkmcnt(0)")
    g.e("s_barrier")
    g.e(f"s_lshl_b32 s16, s{sWv}, 12")
    g.e(f"v_add_u32 v{vL2}, s16, v{vL}")
    for w in range(4):
        for q in range(4):
            g.e(f"ds_read_b128 {vr(kvz[w]+4*q,4)}, v{vL2} offset:{w*16384+q*1024}")
    g.e("s_waitcnt lgkmcnt(0)")
    for i in range(16):
        g.e(f"v_add_f32 v{kvz[0]+i}, v{kvz[0]+i}, v{kvz[1]+i}")
        g.e(f"v_add_f32 v{kvz[2]+i}, v{kvz[2]+i}, v{kvz[3]+i}")
        g.e(f"v_add_f32 v{kvz[0]+i}, v{kvz[0]+i}, v{kvz[2]+i}")
    g.e(f"s_and_b32 s16, s{sWv}, 1")
    g.e(f"s_lshl_b32 s17, s{sJ}, 1")
    g.e("s_add_u32 s16, s16, s17")
    g.e(f"s_lshl_b32 s17, s{sMt}, 5")
    g.e("s_add_u32 s16, s16, s17")
    g.e(f"s_cmp_ge_u32 s{sWv}, 2")
    g.e("s_cbranch_scc1 k1_z")
    g.e("s_lshl_b32 s16, s16, 12")
    for q in range(4):
        g.e(f"buffer_store_dwordx4 {vr(kvz[0]+4*q,4)}, v{vL}, s[40:43], s16 offen offset:{q*1024}")
    g.e(f"s_branch {done}")
    g.label("k1_z")
    g.e("s_lshl_b32 s16, s16, 7")
    g.e(f"v_lshrrev_b32 v{vL}, 5, v{vLane}")
    g.e(f"v_lshlrev_b32 v{vL}, 6, v{vL}")
    g.e("s_mov_b32 exec_lo, 1")
    g.e("s_mov_b32 exec_hi, 1")
    for q in range(4):
        g.e(f"buffer_store_dwordx4 {vr(kvz[0]+4*q,4)}, v{vL}, s[44:47], s16 offen offset:{q*16}")
    g.label(done)
    g.e("s_endpgm")
    return name, va.n, (256, 256, NS * 24576)

def k2(g):
    name = "k2_att_kernel"
    kernel_begin(g, name)
    done = "k2_done"
    vLane = 2; sWv = 3
    common_entry(g, 256, vLane, sWv, done)
    g.e("s_load_dwordx2 s[6:7], s[0:1], 72")
    sH, sC = 20, 21
    g.e(f"s_lshr_b32 s{sH}, s2, 3")
    g.e(f"s_and_b32 s{sC}, s2, 7")
    g.e(f"v_lshlrev_b32 v3, 4, v{vLane}")
    g.e(f"v_lshrrev_b32 v4, 5, v{vLane}")
    g.e("v_lshlrev_b32 v4, 6, v4")
    g.e("s_waitcnt lgkmcnt(0)")
    make_srd(g, 8, 6, 2 * MB, WS_KVP)
    make_srd(g, 12, 6, 64 * 1024, WS_ZP)
    make_srd(g, 24, 6, 4 * MB, WS_PQ)
    make_srd(g, 28, 6, 4 * MB, WS_O)
    g.e(f"s_lshl_b32 s16, s{sWv}, 7")
    g.e(f"s_add_u32 s16, s16, s{sH}")
    KV = 16; Z = 80
    for i in range(4):
        g.e(f"s_add_u32 s17, s16, {32*i}")
        g.e("s_lshl_b32 s18, s17, 12")
        g.e("s_lshl_b32 s19, s17, 7")
        for q in range(4):
            g.e(f"buffer_load_dwordx4 {vr(KV+16*i+4*q,4)}, v3, s[8:11], s18 offen offset:{q*1024}")
        for q in range(4):
            g.e(f"buffer_load_dwordx4 {vr(Z+16*i+4*q,4)}, v4, s[12:15], s19 offen offset:{q*16}")
    PQ = 144
    g.e(f"s_lshl_b32 s16, s{sC}, 3")
    g.e(f"s_lshl_b32 s17, s{sWv}, 1")
    g.e("s_add_u32 s16, s16, s17")
    g.e("s_lshl_b32 s16, s16, 16")
    g.e(f"s_lshl_b32 s17, s{sH}, 11")
    g.e("s_add_u32 s22, s16, s17")
    g.e("s_add_u32 s23, s22, 65536")
    for b in range(2):
        for s in range(2):
            g.e(f"buffer_load_dwordx4 {vr(PQ+8*b+4*s,4)}, v3, s[24:27], s{22+b} offen offset:{s*1024}")
    g.e("s_waitcnt vmcnt(4)")
    for base in (KV, Z):
        for i in range(16):
            g.e(f"v_add_f32 v{base+i}, v{base+i}, v{base+16+i}")
            g.e(f"v_add_f32 v{base+32+i}, v{base+32+i}, v{base+48+i}")
            g.e(f"v_add_f32 v{base+i}, v{base+i}, v{base+32+i}")
    g.e(f"s_lshl_b32 s16, s{sWv}, 13")
    g.e("v_add_u32 v5, s16, v3")
    for k, base in enumerate((KV, Z)):
        for q in range(4):
            g.e(f"ds_write_b128 v5, {vr(base+4*q,4)} offset:{k*4096+q*1024}")
    g.e("s_waitcnt lgkmcnt(0)")
    g.e("s_barrier")
    for k, base in enumerate((KV, Z)):
        for w in range(4):
            for q in range(4):
                g.e(f"ds_read_b128 {vr(base+16*w+4*q,4)}, v3 offset:{w*8192+k*4096+q*1024}")
        g.e("s_waitcnt lgkmcnt(0)")
        for i in range(16):
            g.e(f"v_add_f32 v{base+i}, v{base+i}, v{base+16+i}")
            g.e(f"v_add_f32 v{base+32+i}, v{base+32+i}, v{base+48+i}")
            g.e(f"v_add_f32 v{base+i}, v{base+i}, v{base+32+i}")
    KF = 160; ZF = 168
    for i in range(8):
        g.e(f"v_cvt_pk_bf16_f32 v{KF+i}, v{KV+2*i}, v{KV+2*i+1}")
        g.e(f"v_cvt_pk_bf16_f32 v{ZF+i}, v{Z+2*i}, v{Z+2*i+1}")
    NUM = [16, 32]; DEN = [48, 64]
    zero_regs(g, 16, 64)
    g.e("s_waitcnt vmcnt(0)")
    for b in range(2):
        for s in range(2):
            g.e(f"v_mfma_f32_32x32x16_bf16 {vr(NUM[b],16)}, {vr(KF+4*s,4)}, {vr(PQ+8*b+4*s,4)}, {vr(NUM[b],16)}")
            g.e(f"v_mfma_f32_32x32x16_bf16 {vr(DEN[b],16)}, {vr(ZF+4*s,4)}, {vr(PQ+8*b+4*s,4)}, {vr(DEN[b],16)}")
    g.e("s_nop 15")
    for b in range(2):
        g.e(f"v_add_f32 v{DEN[b]}, 0x{f2u(1e-6):08x}, v{DEN[b]}")
        g.e(f"v_rcp_f32 v{DEN[b]}, v{DEN[b]}")
    g.e("s_nop 0")
    OUT = 80
    for b in range(2):
        for i in range(16):
            g.e(f"v_mul_f32 v{NUM[b]+i}, v{NUM[b]+i}, v{DEN[b]}")
        for i in range(8):
            g.e(f"v_cvt_pk_bf16_f32 v{OUT+8*b+i}, v{NUM[b]+2*i}, v{NUM[b]+2*i+1}")
        for s in range(2):
            g.e(f"buffer_store_dwordx4 {vr(OUT+8*b+4*s,4)}, v3, s[28:31], s{22+b} offen offset:{s*1024}")
    g.label(done)
    g.e("s_endpgm")
    return name, 176, (256, 256, 32768)

def k35(g, which, NA=8, NS=8):
    is3 = which == 3
    name = "k3_wo_kernel" if is3 else "k5_down_kernel"
    KT = 16 if is3 else 56
    KS = KT * 4
    kernel_begin(g, name)
    done = f"k{which}_done"
    va = Alloc(4)
    vLane = 2; vT = 3; sWv = 3
    common_entry(g, 256, vLane, sWv, done)
    g.e(f"s_load_dwordx2 s[4:5], s[0:1], {16 if is3 else 48}")
    g.e("s_load_dwordx2 s[6:7], s[0:1], 72")
    g.e(f"s_load_dwordx2 s[34:35], s[0:1], {0 if is3 else 56}")
    sMt, sNt = 20, 21
    g.e("s_and_b32 s16, s2, 7")
    g.e("s_lshr_b32 s17, s2, 3")
    g.e("s_lshr_b32 s18, s16, 1")
    g.e("s_lshl_b32 s18, s18, 2")
    g.e("s_and_b32 s19, s17, 3")
    g.e(f"s_add_u32 s{sMt}, s18, s19")
    g.e("s_and_b32 s18, s16, 1")
    g.e("s_lshl_b32 s18, s18, 3")
    g.e("s_lshr_b32 s19, s17, 2")
    g.e(f"s_add_u32 s{sNt}, s18, s19")
    RB, CB, D = 1, 2, 4
    acc = [[va.get(16, 4) for cb in range(CB)]]
    res = va.get(16, 4)
    araw = [va.get(4, 4) for _ in range(NA * 4 * RB)]
    bfr = [va.get(4, 4) for _ in range(D * CB)]
    vA = [va.get()]; vBl = va.get(); vBrd = va.get()
    vD = [va.get() for _ in range(2)]
    vH = va.get(); vR = va.get()
    sRbg = 22
    g.e(f"s_lshl_b32 s{sRbg}, s{sMt}, 2")
    g.e(f"s_add_u32 s{sRbg}, s{sRbg}, s{sWv}")
    g.e(f"s_mul_i32 s16, s{sRbg}, {KS*1024}")
    g.e(f"v_lshlrev_b32 v{vA[0]}, 4, v{vLane}")
    g.e(f"v_add_u32 v{vA[0]}, s16, v{vA[0]}")
    g.e(f"s_lshl_b32 s16, s{sRbg}, 16")
    g.e(f"s_lshl_b32 s17, s{sNt}, 12")
    g.e("s_add_u32 s16, s16, s17")
    g.e(f"v_lshlrev_b32 v{vH}, 4, v{vLane}")
    g.e(f"v_add_u32 v{vH}, s16, v{vH}")
    g.e(f"v_and_b32 v{vR}, 31, v{vLane}")
    g.e(f"v_lshlrev_b32 v{vR}, 11, v{vR}")
    g.e(f"v_lshrrev_b32 v{vT}, 5, v{vLane}")
    g.e(f"v_lshl_add_u32 v{vR}, v{vT}, 4, v{vR}")
    g.e(f"s_lshl_b32 s16, s{sRbg}, 16")
    g.e(f"s_lshl_b32 s17, s{sNt}, 7")
    g.e("s_add_u32 s16, s16, s17")
    g.e(f"v_add_u32 v{vR}, s16, v{vR}")
    emit_vBl_std(g, vBl, vLane, vT)
    emit_dma_lane_std(g, vD[0], vLane, vT, 2048, 16)
    g.e(f"s_mul_i32 s16, s{sWv}, {16*2048}")
    g.e(f"s_lshl_b32 s17, s{sNt}, 7")
    g.e("s_add_u32 s16, s16, s17")
    g.e(f"v_add_u32 v{vD[0]}, s16, v{vD[0]}")
    g.e(f"v_add_u32 v{vD[1]}, {8*2048}, v{vD[0]}")
    dma = [(vD[0], 0, False), (vD[1], 1024, False)]
    sWave = 23
    g.e(f"s_lshl_b32 s{sWave}, s{sWv}, 11")
    g.e("s_waitcnt lgkmcnt(0)")
    if is3: make_srd(g, 8, 6, 4 * MB, WS_O)
    else: make_srd(g, 8, 6, 64 * 224 * 1024, WS_ACT)
    make_srd(g, 12, 4, KT * 64 * 2048)
    make_srd(g, 36, 6, 4 * MB, WS_H)
    make_srd(g, 40, 34, 4 * MB)
    for j in range(4):
        if is3: g.e(f"buffer_load_dwordx4 {vr(res+4*j,4)}, v{vR}, s[40:43], 0 offen offset:{j*32}")
        else: g.e(f"buffer_load_dwordx4 {vr(res+4*j,4)}, v{vH}, s[36:39], 0 offen offset:{j*1024}")
    zero_regs(g, acc[0][0], 32)
    c = dict(RB=RB, CB=CB, D=D, NA=NA, NS=NS, KT=KT, acc=acc, araw=araw, bfr=bfr, vA=vA, vBl=vBl, vBrd=vBrd,
             srdA=8, srdB=12, sregs=(24, 25, 26, 27, 28, 29, 30, 31), sAprev=32, stage=8192, tileB=64 * 2048,
             dma=dma, sWave=sWave, swap=[1, 1], bar_cb=0,
             b_imm=lambda kk, cb, q: (2 * kk + q) * 1024 + cb * 512)
    gemm_core(g, c)
    ep = Alloc(araw[0])
    t = ep.get(4)
    if is3:
        for j in range(4):
            g.e(f"v_permlane32_swap_b32 v{res+4*j}, v{res+4*j+2}")
            g.e(f"v_permlane32_swap_b32 v{res+4*j+1}, v{res+4*j+3}")
        g.e("s_nop 1")
    a0 = acc[0][0]
    for d in range(16):
        g.e(f"v_lshlrev_b32 v{t}, 16, v{res+d}")
        g.e(f"v_and_b32 v{t+1}, 0xffff0000, v{res+d}")
        g.e(f"v_add_f32 v{a0+2*d}, v{a0+2*d}, v{t}")
        g.e(f"v_add_f32 v{a0+2*d+1}, v{a0+2*d+1}, v{t+1}")
    out = ep.get(16, 4)
    for d in range(16):
        g.e(f"v_cvt_pk_bf16_f32 v{out+d}, v{a0+2*d}, v{a0+2*d+1}")
    if is3:
        for j in range(4):
            g.e(f"buffer_store_dwordx4 {vr(out+4*j,4)}, v{vH}, s[36:39], 0 offen offset:{j*1024}")
        S = ep.get(2, 2); S2 = ep.get(2, 2)
        g.e(f"v_mov_b32 v{S}, 0")
        g.e(f"v_mov_b32 v{S+1}, 0")
        for d in range(16):
            g.e(f"v_lshlrev_b32 v{t}, 16, v{out+d}")
            g.e(f"v_and_b32 v{t+1}, 0xffff0000, v{out+d}")
            g.e(f"v_add_f32 v{S}, v{S}, v{t}")
            g.e(f"v_fma_f32 v{S+1}, v{t}, v{t}, v{S+1}")
            g.e(f"v_add_f32 v{S}, v{S}, v{t+1}")
            g.e(f"v_fma_f32 v{S+1}, v{t+1}, v{t+1}, v{S+1}")
        g.e(f"v_mov_b32 v{S2}, v{S}")
        g.e(f"v_mov_b32 v{S2+1}, v{S+1}")
        g.e("s_nop 1")
        g.e(f"v_permlane32_swap_b32 v{S}, v{S2}")
        g.e(f"v_permlane32_swap_b32 v{S+1}, v{S2+1}")
        g.e("s_nop 1")
        g.e(f"v_add_f32 v{S}, v{S}, v{S2}")
        g.e(f"v_add_f32 v{S+1}, v{S+1}, v{S2+1}")
        make_srd(g, 44, 6, 256 * 1024, WS_ST)
        g.e(f"v_and_b32 v{t}, 31, v{vLane}")
        g.e(f"v_lshlrev_b32 v{t}, 7, v{t}")
        g.e(f"s_lshl_b32 s16, s{sRbg}, 12")
        g.e(f"s_lshl_b32 s17, s{sNt}, 3")
        g.e("s_add_u32 s16, s16, s17")
        g.e("s_mov_b32 exec_hi, 0")
        g.e(f"buffer_store_dwordx2 {vr(S,2)}, v{t}, s[44:47], s16 offen")
    else:
        g.e("s_nop 1")
        for j in range(4):
            g.e(f"v_permlane32_swap_b32 v{out+4*j}, v{out+4*j+2}")
            g.e(f"v_permlane32_swap_b32 v{out+4*j+1}, v{out+4*j+3}")
        g.e("s_nop 1")
        for j in range(4):
            g.e(f"buffer_store_dwordx4 {vr(out+4*j,4)}, v{vR}, s[40:43], 0 offen offset:{j*32}")
    g.label(done)
    g.e("s_endpgm")
    return name, va.n, (256, 256, NS * 8192)

def k4(g, NA=2, NS=5):
    name = "k4_ffn_kernel"
    kernel_begin(g, name)
    done = "k4_done"
    va = Alloc(4)
    vLane = 2; vT = 3; sWv = 3
    UOFF = 14464; STAGE = 28800
    common_entry(g, 256, vLane, sWv, done)
    g.e("s_load_dwordx4 s[36:39], s[0:1], 32")
    g.e("s_load_dwordx2 s[6:7], s[0:1], 72")
    sMt, sNt = 20, 21
    g.e("s_and_b32 s16, s2, 7")
    g.e("s_lshr_b32 s17, s2, 3")
    g.e("s_and_b32 s18, s16, 1")
    g.e("s_lshl_b32 s18, s18, 2")
    g.e("s_and_b32 s19, s17, 3")
    g.e(f"s_add_u32 s{sMt}, s18, s19")
    g.e("s_lshr_b32 s18, s16, 1")
    g.e("s_lshl_b32 s18, s18, 3")
    g.e("s_lshr_b32 s19, s17, 2")
    g.e(f"s_add_u32 s{sNt}, s18, s19")
    RB, CB, D = 1, 7, 1
    acc = [[va.get(16, 4) for cb in range(CB)]]
    araw = [va.get(4, 4) for _ in range(NA * 4 * RB)]
    anorm = [va.get(4, 4) for _ in range(2)]
    bfr = [va.get(4, 4) for _ in range(D * CB)]
    tmp = [va.get() for _ in range(4)]
    vA = [va.get()]; vBl = va.get(); vBrd = va.get()
    vD = [va.get() for _ in range(4)]
    vRs = va.get(); vMs = va.get(); vS = va.get()
    sRbg = 22
    g.e(f"s_lshl_b32 s{sRbg}, s{sMt}, 3")
    g.e(f"s_add_u32 s{sRbg}, s{sRbg}, s{sWv}")
    g.e(f"s_lshl_b32 s16, s{sRbg}, 16")
    g.e(f"v_lshlrev_b32 v{vA[0]}, 4, v{vLane}")
    g.e(f"v_add_u32 v{vA[0]}, s16, v{vA[0]}")
    g.e(f"v_and_b32 v{vS}, 31, v{vLane}")
    g.e(f"v_lshlrev_b32 v{vS}, 7, v{vS}")
    g.e(f"s_lshl_b32 s16, s{sRbg}, 12")
    g.e(f"v_add_u32 v{vS}, s16, v{vS}")
    g.e(f"v_lshrrev_b32 v{vT}, 5, v{vLane}")
    g.e(f"v_bfe_u32 v{vBl}, v{vLane}, 2, 2")
    g.e(f"v_lshl_add_u32 v{vT}, v{vT}, 2, v{vBl}")
    g.e(f"v_mul_u32_u24 v{vBl}, 224, v{vT}")
    g.e(f"v_bfe_u32 v{vT}, v{vLane}, 4, 1")
    g.e(f"v_mul_u32_u24 v{vT}, {UOFF}, v{vT}")
    g.e(f"v_add_u32 v{vBl}, v{vBl}, v{vT}")
    g.e(f"v_and_b32 v{vT}, 3, v{vLane}")
    g.e(f"v_lshl_add_u32 v{vBl}, v{vT}, 3, v{vBl}")
    g.e(f"s_lshr_b32 s16, s{sWv}, 1")
    g.e(f"s_mul_i32 s17, s16, {16*7168}")
    g.e(f"s_mul_i32 s18, s{sNt}, 224")
    g.e("s_add_u32 s17, s17, s18")
    for i in range(4):
        g.e(f"v_add_u32 v{tmp[0]}, {64*i}, v{vLane}")
        g.e(f"v_mul_u32_u24 v{tmp[1]}, 4682, v{tmp[0]}")
        g.e(f"v_lshrrev_b32 v{tmp[1]}, 16, v{tmp[1]}")
        g.e(f"v_mul_u32_u24 v{tmp[2]}, 14, v{tmp[1]}")
        g.e(f"v_sub_u32 v{tmp[2]}, v{tmp[0]}, v{tmp[2]}")
        g.e(f"v_mul_u32_u24 v{tmp[1]}, 7168, v{tmp[1]}")
        g.e(f"v_lshl_add_u32 v{tmp[1]}, v{tmp[2]}, 4, v{tmp[1]}")
        g.e(f"v_add_u32 v{vD[i]}, s17, v{tmp[1]}")
    dma = [(vD[i], i * 1024, i == 3) for i in range(4)]
    sWave = 23
    g.e(f"s_mul_i32 s{sWave}, s16, 3584")
    g.e(f"s_and_b32 s18, s{sWv}, 1")
    g.e(f"s_mul_i32 s19, s18, {UOFF}")
    g.e(f"s_add_u32 s{sWave}, s{sWave}, s19")
    g.e("s_waitcnt lgkmcnt(0)")
    g.e("s_cmp_eq_u32 s18, 0")
    g.e("s_cselect_b32 s4, s36, s38")
    g.e("s_cselect_b32 s5, s37, s39")
    make_srd(g, 8, 6, 4 * MB, WS_H)
    make_srd(g, 12, 4, 1024 * 7168)
    make_srd(g, 40, 6, 256 * 1024, WS_ST)
    make_srd(g, 44, 6, 64 * 224 * 1024, WS_ACT)
    st0 = acc[0][0]
    for j in range(8):
        g.e(f"buffer_load_dwordx4 {vr(st0+4*j,4)}, v{vS}, s[40:43], 0 offen offset:{j*16}")
    def hook(st):
        for j in (16, 8, 4, 2):
            for i in range(j):
                st.i(f"v_add_f32 v{st0+i}, v{st0+i}, v{st0+j+i}")
        st.i(f"v_mul_f32 v{st0}, 0x{f2u(1/1024):08x}, v{st0}")
        st.i(f"v_mul_f32 v{st0+1}, 0x{f2u(1/1024):08x}, v{st0+1}")
        st.i(f"v_fma_f32 v{st0+1}, -v{st0}, v{st0}, v{st0+1}")
        st.i(f"v_max_f32 v{st0+1}, 0, v{st0+1}")
        st.i(f"v_add_f32 v{st0+1}, 0x{f2u(1e-5):08x}, v{st0+1}")
        st.i(f"v_rsq_f32 v{vRs}, v{st0+1}")
        st.i("s_nop 0")
        st.i(f"v_mul_f32 v{vMs}, v{st0}, v{vRs}")
        st.i(f"v_sub_f32 v{vMs}, 0, v{vMs}")
        for i in range(112): st.i(f"v_mov_b32 v{st0+i}, 0")
    c = dict(RB=RB, CB=CB, D=D, NA=NA, NS=NS, KT=16, acc=acc, araw=araw, bfr=bfr, vA=vA, vBl=vBl, vBrd=vBrd,
             anorm=anorm, norm=True, nrm=[(vRs, vMs)], tmp=tmp, hook_norm=hook,
             srdA=8, srdB=12, sregs=(24, 25, 26, 27, 28, 29, 30, 31), sAprev=32, stage=STAGE, tileB=64 * 7168,
             dma=dma, sWave=sWave, swap=[1] * 7,
             b_imm=lambda kk, cb, q: (16 * kk + 8 * q) * 224 + cb * 32)
    gemm_core(g, c)
    C1 = -2.0 * 0.7978845608028654 * LOG2E
    C2 = C1 * 0.044715
    g.e(f"s_mov_b32 s16, 0x{f2u(C1):08x}")
    g.e(f"s_mov_b32 s17, 0x{f2u(C2):08x}")
    g.e(f"v_mov_b32 v{vT}, s16")
    ep = Alloc(araw[0])
    T = ep.get(8); O = [ep.get(4, 4) for _ in range(2)]
    vO = ep.get()
    g.e(f"s_mul_i32 s18, s{sRbg}, 224")
    g.e(f"s_mul_i32 s19, s{sNt}, 7")
    g.e("s_add_u32 s18, s18, s19")
    g.e("s_lshl_b32 s18, s18, 10")
    g.e(f"v_lshlrev_b32 v{vO}, 4, v{vLane}")
    g.e(f"v_add_u32 v{vO}, s18, v{vO}")
    g.e("s_mov_b32 s19, 4096")
    for cb in range(CB):
        a = acc[0][cb]
        for i in range(8): g.e(f"v_mul_f32 v{T+i}, v{a+i}, v{a+i}")
        for i in range(8): g.e(f"v_fma_f32 v{T+i}, v{T+i}, s17, v{vT}")
        for i in range(8): g.e(f"v_mul_f32 v{T+i}, v{T+i}, v{a+i}")
        for i in range(8): g.e(f"v_exp_f32 v{T+i}, v{T+i}")
        for i in range(8): g.e(f"v_mul_f32 v{a+i}, v{a+i}, v{a+8+i}")
        for i in range(8): g.e(f"v_add_f32 v{T+i}, 1.0, v{T+i}")
        for i in range(8): g.e(f"v_rcp_f32 v{T+i}, v{T+i}")
        g.e("s_nop 0")
        for i in range(8): g.e(f"v_mul_f32 v{a+i}, v{a+i}, v{T+i}")
        o = O[cb & 1]
        for i in range(4): g.e(f"v_cvt_pk_bf16_f32 v{o+i}, v{a+2*i}, v{a+2*i+1}")
        if cb < 4: g.e(f"buffer_store_dwordx4 {vr(o,4)}, v{vO}, s[44:47], 0 offen offset:{cb*1024}")
        else: g.e(f"buffer_store_dwordx4 {vr(o,4)}, v{vO}, s[44:47], s19 offen offset:{(cb-4)*1024}")
    g.label(done)
    g.e("s_endpgm")
    return name, va.n, (256, 512, NS * STAGE)

def main(out):
    g = G()
    ks = []
    ks.append(k0(g))
    ks.append(k1(g))
    ks.append(k2(g))
    ks.append(k35(g, 3))
    ks.append(k4(g))
    ks.append(k35(g, 5))
    head = []
    for name, nv, (grid, blk, lds) in ks:
        head.append(f"; @launch kernel={name} grid=({grid},1,1) block=({blk},1,1) lds={lds}")
    head.append('.amdgcn_target "amdgcn-amd-amdhsa--gfx950"')
    head.append(".text")
    txt = "\n".join(head) + "\n" + g.text()
    txt += '.section .rodata,"a"\n'
    for name, nv, _ in ks:
        txt += ".p2align 6\n" + kernel_desc(name, nv)
    open(out, "w").write(txt)
    for name, nv, l in ks: print(name, "vgpr", nv, l)

if __name__ == "__main__":
    main(sys.argv[1] if len(sys.argv) > 1 else f"cdna_kernels/{NAME}.s")
```

```python
import sys, struct

NAME = "sequential_preLN__linear_attn_block__geglu_ffn__prompt"
MB = 1 << 20
WS_XN = 0 * MB
WS_PQ = 8 * MB
WS_KVP = 12 * MB
WS_ZP = 14 * MB
WS_O = 16 * MB
WS_H = 20 * MB
WS_ST = 24 * MB
WS_ACT = 32 * MB
WS_BYTES = 48 * MB
OOB = 0x7f000000

def f2u(x):
    return struct.unpack("<I", struct.pack("<f", x))[0]

class G:
    def __init__(self):
        self.lines = []
        self.uid = 0
    def e(self, s):
        self.lines.append("    " + s)
    def label(self, s):
        self.lines.append(s + ":")
    def raw(self, s):
        self.lines.append(s)
    def newlabel(self, p="L"):
        self.uid += 1
        return f"{p}_{self.uid}"
    def text(self):
        return "\n".join(self.lines) + "\n"

def vr(b, n=1):
    return f"v{b}" if n == 1 else f"v[{b}:{b+n-1}]"
def sr(b, n=1):
    return f"s{b}" if n == 1 else f"s[{b}:{b+n-1}]"

class Alloc:
    def __init__(self, start=0, limit=256):
        self.n = start; self.limit = limit
    def get(self, cnt=1, align=1):
        self.n = (self.n + align - 1) // align * align
        b = self.n; self.n += cnt
        assert self.n <= self.limit, f"out of regs {self.n}"
        return b

def kernel_begin(g, name):
    g.raw(f".globl {name}")
    g.raw(".p2align 8")
    g.raw(f".type {name},@function")
    g.label(name)

def kernel_desc(name, nv, ns=96):
    nv = max(nv, 8)
    acc = (nv + 3) // 4 * 4
    return f""".amdhsa_kernel {name}
  .amdhsa_next_free_vgpr {nv}
  .amdhsa_next_free_sgpr {ns}
  .amdhsa_accum_offset {acc}
  .amdhsa_group_segment_fixed_size 0
  .amdhsa_kernarg_size 80
  .amdhsa_user_sgpr_count 2
  .amdhsa_user_sgpr_kernarg_segment_ptr 1
  .amdhsa_system_sgpr_workgroup_id_x 1
.end_amdhsa_kernel
"""

import os
PF = os.environ.get("GNOPF", "") == ""
STAMP = os.environ.get("GSTAMP", "") != ""
def stamp(g, i):
    if not STAMP: return
    g.e(f"s_memtime s[{60+2*i}:{61+2*i}]")
    g.e("s_waitcnt lgkmcnt(0)")
def stamp_flush(g, n):
    if not STAMP: return
    L = g.newlabel("Lst")
    g.e("s_cmp_lg_u32 s2, 5")
    g.e(f"s_cbranch_scc1 {L}")
    g.e("s_mov_b64 exec, -1")
    g.e("s_load_dwordx2 s[80:81], s[0:1], 64")
    g.e("s_waitcnt lgkmcnt(0)")
    g.e("s_mov_b32 s82, 256")
    g.e("s_mov_b32 s83, 0x00020000")
    g.e("s_lshl_b32 s84, s3, 5")
    g.e("v_mov_b32 v0, s84")
    for i in range(n):
        g.e(f"s_sub_u32 s85, s{60+2*i}, s60")
        g.e("v_mov_b32 v1, s85")
        g.e(f"buffer_store_dword v1, v0, s[80:83], 0 offen offset:{4*i}")
    g.label(L)

def make_srd(g, d, base, nbytes, add=0):
    if add:
        g.e(f"s_add_u32 s{d}, s{base}, {add}")
        g.e(f"s_addc_u32 s{d+1}, s{base+1}, 0")
    else:
        g.e(f"s_mov_b32 s{d}, s{base}")
        g.e(f"s_mov_b32 s{d+1}, s{base+1}")
    g.e(f"s_mov_b32 s{d+2}, {nbytes}")
    g.e(f"s_mov_b32 s{d+3}, 0x00020000")

import os
DBG = set(os.environ.get("GDBG", "").split(","))
class Stream:
    def __init__(self):
        self.items = []
        self.vm = []; self.lg = []
        self.vm_done = 0; self.lg_done = 0
    def i(self, text):
        self.items.append(('i', text))
    def vmop(self, text, oid):
        self.items.append(('i', text)); self.vm.append(oid)
    def lgop(self, text, oid):
        self.items.append(('i', text)); self.lg.append(oid)
    def need(self, kind, oids):
        lst = self.vm if kind == 'vm' else self.lg
        done = self.vm_done if kind == 'vm' else self.lg_done
        idx = max(lst.index(o) for o in oids)
        if idx < done:
            self.items.append(['w', kind, None]); return
        n = len(lst) - 1 - idx
        cap = 63 if kind == 'vm' else 15
        n = min(n, cap)
        self.items.append(['w', kind, n])
        if kind == 'vm': self.vm_done = len(lst) - n
        else: self.lg_done = len(lst) - n

def gemm_core(g, c):
    RB, CB, D, NA, NS, KT = c['RB'], c['CB'], c['D'], c['NA'], c['NS'], c['KT']
    norm = c.get('norm', False)
    acc = c['acc']; araw = c['araw']; bfr = c['bfr']; anorm = c.get('anorm')
    vA = c['vA']; vBl = c['vBl']; vBrd = c['vBrd']
    srdA = c['srdA']; srdB = c['srdB']
    sA, sAe, sB, sBe, sW, sWw, sR, sCnt = c['sregs']
    stage = c['stage']; tileB = c['tileB']
    dma = c['dma']
    sWave = c['sWave']
    swap = c['swap']; b_imm = c['b_imm']
    bar_cb = c.get('bar_cb', min(1, CB - 1))
    tmp = c.get('tmp')
    U = NA
    assert KT % U == 0
    V = max(NA, NS - 1)
    PB = NS - 1

    def a_reg(t, kk, rb): return araw[((t % NA) * 4 + kk) * RB + rb]
    def b_reg(s, cb): return bfr[(s % D) * CB + cb]
    def n_reg(s, rb): return anorm[(s & 1) * RB + rb]

    def gen_tile(st, t):
        real = t >= 0
        st.i(f"s_cmp_lt_u32 s{sA}, {KT*4096}")
        st.i(f"s_cselect_b32 s{sAe}, s{sA}, {OOB}")
        st.i(f"s_add_u32 s{sA}, s{sA}, 4096")
        barstep = 4 - D
        dma_pending = []
        for kk in range(4):
            s = 4 * t + kk
            fill = []
            if norm:
                ps = s
            else:
                ps = s - 1
            pt, pk = divmod(ps, 4)
            for rb in range(RB):
                tgt = pt + NA
                if pt == t:
                    so = f"s{sAe}"
                else:
                    so = f"s{c['sAprev']}"
                def f(rb=rb, pt=pt, pk=pk, tgt=tgt, so=so):
                    st.vmop(f"buffer_load_dwordx4 {vr(a_reg(pt,pk,rb),4)}, v{vA[rb]}, {sr(srdA,4)}, {so} offen offset:{pk*1024}", ('A', tgt, pk, rb))
                fill.append(f)
            if kk == 0 and not norm:
                pass
            nfill = []
            if norm and s + 1 >= 0:
                nt_, nk_ = divmod(s + 1, 4)
                for rb in range(RB):
                    src = a_reg(nt_, nk_, rb); dst = n_reg(s + 1, rb)
                    rs, ms = c['nrm'][rb]
                    for d in range(4):
                        t0, t1 = tmp[(d & 1) * 2], tmp[(d & 1) * 2 + 1]
                        first = (d == 0)
                        def f(src=src, dst=dst, d=d, t0=t0, t1=t1, rs=rs, ms=ms, first=first, nt_=nt_, nk_=nk_, rb=rb):
                            if first and (nt_, nk_, rb) == (0, 0, 0) and c.get('hook_norm'):
                                st.i(f"s_waitcnt vmcnt({min(63, len(st.vm))})")
                                c['hook_norm'](st)
                            if first: st.need('vm', [('A', nt_, nk_, rb)])
                            st.i(f"v_lshlrev_b32 v{t0}, 16, v{src+d}")
                            st.i(f"v_and_b32 v{t1}, 0xffff0000, v{src+d}")
                            st.i(f"v_fma_f32 v{t0}, v{t0}, v{rs}, v{ms}")
                            st.i(f"v_fma_f32 v{t1}, v{t1}, v{rs}, v{ms}")
                            st.i(f"v_cvt_pk_bf16_f32 v{dst+d}, v{t0}, v{t1}")
                        nfill.append(f)
            deferred = []
            def issue_reads(ts, cb):
                tt, tk = divmod(ts, 4)
                for q in range(2):
                    st.lgop(f"ds_read_b64_tr_b16 {vr(b_reg(ts,cb)+2*q,2)}, v{vBrd} offset:{b_imm(tk,cb,q)}", ('R', ts, cb, q))
            bar_done = kk > barstep
            queue = fill + nfill if not norm else fill + nfill
            per = -(-len(queue) // CB) if queue else 0
            for cb in range(CB):
                if real:
                    st.need('lg', [('R', s, cb, 0), ('R', s, cb, 1)])
                    if cb == 0 and not norm:
                        st.need('vm', [('A', t, kk, rb) for rb in range(RB)])
                    for rb in range(RB):
                        a = n_reg(s, rb) if norm else a_reg(t, kk, rb)
                        b = b_reg(s, cb)
                        x, y = (b, a) if swap[cb] else (a, b)
                        st.i(f"v_mfma_f32_32x32x16_bf16 {vr(acc[rb][cb],16)}, {vr(x,4)}, {vr(y,4)}, {vr(acc[rb][cb],16)}")
                if kk == barstep and cb == bar_cb and t >= -1:
                    if t == -1 and STAMP:
                        st.i("s_memtime s[72:73]"); st.i("s_waitcnt lgkmcnt(0)")
                    st.need('vm', [('D', t + 1, i) for i in range(len(dma))])
                    st.i("s_barrier")
                    if t == -1 and STAMP:
                        st.i("s_memtime s[74:75]"); st.i("s_waitcnt lgkmcnt(0)")
                    st.i(f"s_add_u32 s{sR}, s{sR}, {stage}")
                    st.i(f"s_cmp_lt_u32 s{sR}, {NS*stage}")
                    st.i(f"s_cselect_b32 s{sR}, s{sR}, 0")
                    st.i(f"v_add_u32 v{vBrd}, s{sR}, v{vBl}")
                if kk == barstep and cb == bar_cb:
                    bar_done = True
                    st.i(f"s_cmp_lt_u32 s{sB}, {KT*tileB}")
                    st.i(f"s_cselect_b32 s{sBe}, s{sB}, {OOB}")
                    st.i(f"s_add_u32 s{sB}, s{sB}, {tileB}")
                    st.i(f"s_add_u32 s{sWw}, s{sW}, s{sWave}")
                    st.i(f"s_add_u32 s{sW}, s{sW}, {stage}")
                    st.i(f"s_cmp_lt_u32 s{sW}, {NS*stage}")
                    st.i(f"s_cselect_b32 s{sW}, s{sW}, 0")
                    c['_dmaq'] = [(t + PB, i) for i in range(len(dma))]
                    if (s + D) >= 0:
                        for dcb in deferred: issue_reads(s + D, dcb)
                    deferred = []
                if s + D >= 0:
                    crosses = (kk + D) >= 4
                    if crosses and not bar_done:
                        deferred.append(cb)
                    else:
                        issue_reads(s + D, cb)
                for _ in range(per):
                    if queue: queue.pop(0)()
                if real and kk == 2 and cb == CB - 1:
                    for (pt_, psrd) in c.get('pf', []):
                        if pt_ == t % U:
                            st.vmop(f"buffer_load_dword v{c['pf_junk']}, v{c['pf_voff']}, {sr(psrd,4)}, s{c['pf_soff']} offen", ('P', t, psrd))
                    if c.get('pf') and t % U == U - 1:
                        st.i(f"s_add_u32 s{c['pf_soff']}, s{c['pf_soff']}, {c['pf_step']}")
                if c.get('_dmaq'):
                    tt, i = c['_dmaq'].pop(0)
                    vo, lc, half = dma[i]
                    st.i(f"s_add_u32 m0, s{sWw}, {lc}")
                    if half: st.i("s_mov_b32 exec_hi, 0")
                    else: st.i("s_nop 0")
                    st.vmop(f"buffer_load_dwordx4 v{vo}, {sr(srdB,4)}, s{sBe} offen lds", ('D', tt, i))
                    if half: st.i("s_mov_b32 exec_hi, -1")
            while queue: queue.pop(0)()
            if kk == 3:
                st.i(f"s_mov_b32 s{c['sAprev']}, s{sAe}")

    g.e(f"s_mov_b32 s{sA}, {(NA - V) * 4096 & 0xffffffff}")
    g.e(f"s_mov_b32 s{sB}, {((PB - V) * tileB) & 0xffffffff}")
    g.e(f"s_mov_b32 s{sW}, {((PB - V) % NS) * stage}")
    g.e(f"s_mov_b32 s{sR}, {(NS - 1) * stage}")
    g.e(f"s_mov_b32 s{c['sAprev']}, {OOB}")
    g.e(f"s_mov_b32 s{sCnt}, {KT // U}")
    st = Stream()
    c['_dmaq'] = []
    for t in range(-V, 0):
        gen_tile(st, t)
    n_pro = len(st.items)
    for t in range(0, U): gen_tile(st, t)
    n_b1 = len(st.items)
    for t in range(U, 2 * U): gen_tile(st, t)
    n_b2 = len(st.items)
    b1 = st.items[n_pro:n_b1]; b2 = st.items[n_b1:n_b2]
    assert len(b1) == len(b2), (len(b1), len(b2))
    for x, y in zip(b1, b2):
        assert x[0] == y[0]
        if x[0] == 'w':
            vals = [v for v in (x[2], y[2]) if v is not None]
            x[2] = min(vals) if vals else None
        else:
            assert x[1] == y[1], (x[1], y[1])
    dbg = DBG if c.get('name') in DBG else set()
    def out(items, loop=False):
        for it in items:
            if it[0] == 'i':
                t_ = it[1]
                if loop:
                    if 'nodma' in dbg and t_.endswith('lds'): continue
                    if 'noaload' in dbg and t_.startswith('buffer_load') and not t_.endswith('lds'): continue
                    if 'nobar' in dbg and t_ == 's_barrier': continue
                    if 'nomfma' in dbg and t_.startswith('v_mfma'): continue
                    if 'nonorm' in dbg and (t_.startswith('v_lshlrev_b32') or t_.startswith('v_and_b32') or t_.startswith('v_fma') or t_.startswith('v_cvt_pk')): continue
                    if 'noread' in dbg and t_.startswith('ds_read'): continue
                g.e(it[1])
            elif it[2] is not None:
                g.e(f"s_waitcnt {'vmcnt' if it[1]=='vm' else 'lgkmcnt'}({it[2]})")
    out(st.items[:n_pro])
    if c.get('pre_loop'): c['pre_loop']()
    stamp(g, 1)
    L = g.newlabel("Lloop")
    g.label(L)
    out(b1, True)
    g.e(f"s_sub_u32 s{sCnt}, s{sCnt}, 1")
    g.e(f"s_cmp_lg_u32 s{sCnt}, 0")
    g.e(f"s_cbranch_scc1 {L}")
    stamp(g, 2)
    g.e("s_waitcnt vmcnt(0) lgkmcnt(0)")
    g.e("s_nop 15")
    stamp(g, 3)

LOG2E = 1.4426950408889634

def common_entry(g, nwg, vLane, sWv, done):
    g.e(f"s_cmp_ge_u32 s2, {nwg}")
    g.e(f"s_cbranch_scc1 {done}")
    g.e(f"v_and_b32 v{vLane}, 63, v0")
    g.e(f"v_lshrrev_b32 v1, 6, v0")
    g.e("s_nop 0")
    g.e(f"v_readfirstlane_b32 s{sWv}, v1")
    stamp(g, 0)

def emit_vBl_std(g, vBl, vLane, t):
    g.e(f"v_lshrrev_b32 v{vBl}, 5, v{vLane}")
    g.e(f"v_lshlrev_b32 v{vBl}, 8, v{vBl}")
    g.e(f"v_bfe_u32 v{t}, v{vLane}, 2, 2")
    g.e(f"v_lshl_add_u32 v{vBl}, v{t}, 6, v{vBl}")
    g.e(f"v_bfe_u32 v{t}, v{vLane}, 4, 1")
    g.e(f"v_lshl_add_u32 v{vBl}, v{t}, 5, v{vBl}")
    g.e(f"v_and_b32 v{t}, 3, v{vLane}")
    g.e(f"v_lshl_add_u32 v{vBl}, v{t}, 3, v{vBl}")

def emit_dma_lane_std(g, vD, vLane, t, ldb, sT):
    g.e(f"v_bfe_u32 v{t}, v{vLane}, 2, 3")
    g.e(f"s_mov_b32 s{sT}, {ldb}")
    g.e(f"v_mul_lo_u32 v{vD}, v{t}, s{sT}")
    g.e(f"v_lshrrev_b32 v{t}, 5, v{vLane}")
    g.e(f"v_lshl_add_u32 v{vD}, v{t}, 6, v{vD}")
    g.e(f"v_and_b32 v{t}, 3, v{vLane}")
    g.e(f"v_lshl_add_u32 v{vD}, v{t}, 4, v{vD}")

def zero_regs(g, base, n):
    for i in range(n): g.e(f"v_mov_b32 v{base+i}, 0")

def k0(g):
    name = "k0_ln_kernel"
    kernel_begin(g, name)
    done = "k0_done"
    sWv = 3
    common_entry(g, 256, 2, sWv, done)
    g.e("s_load_dwordx4 s[4:7], s[0:1], 0")
    g.e("s_load_dwordx2 s[28:29], s[0:1], 72")
    g.e("v_and_b32 v3, 7, v2")
    g.e("v_lshrrev_b32 v4, 3, v2")
    g.e("s_lshl_b32 s16, s2, 3")
    g.e("v_add_u32 v5, s16, v3")
    g.e("v_lshlrev_b32 v5, 11, v5")
    g.e("s_lshl_b32 s17, s3, 4")
    g.e("v_add_u32 v6, s17, v4")
    g.e("v_lshl_add_u32 v5, v6, 5, v5")
    g.e("s_waitcnt lgkmcnt(0)")
    make_srd(g, 8, 4, 4 * MB)
    make_srd(g, 12, 28, 4 * MB, WS_XN)
    g.e("buffer_load_dwordx4 v[8:11], v5, s[8:11], 0 offen")
    g.e("buffer_load_dwordx4 v[12:15], v5, s[8:11], 0 offen offset:16")
    g.e("buffer_load_dwordx4 v[16:19], v5, s[8:11], 0 offen offset:256")
    g.e("buffer_load_dwordx4 v[20:23], v5, s[8:11], 0 offen offset:272")
    if PF:
        make_srd(g, 24, 6, 1024 * 6144)
        g.e("s_lshl_b32 s22, s2, 14")
        g.e("v_lshl_add_u32 v28, v0, 6, s22")
        g.e(f"s_mov_b32 s23, {4*MB}")
        g.e("buffer_load_dword v29, v28, s[24:27], 0 offen")
        g.e("buffer_load_dword v30, v28, s[24:27], s23 offen")
    g.e("s_lshr_b32 s18, s2, 2")
    g.e("s_lshl_b32 s18, s18, 16")
    g.e("s_and_b32 s19, s2, 3")
    g.e("s_lshl_b32 s19, s19, 7")
    g.e("s_add_u32 s18, s18, s19")
    g.e("v_lshlrev_b32 v7, 10, v6")
    g.e("v_lshl_add_u32 v7, v3, 4, v7")
    g.e("v_add_u32 v7, s18, v7")
    g.e("v_mov_b32 v24, 0")
    g.e("v_mov_b32 v25, 0")
    g.e(f"s_waitcnt vmcnt({2 if PF else 0})")
    for d in range(16):
        g.e(f"v_lshlrev_b32 v{32+2*d}, 16, v{8+d}")
        g.e(f"v_and_b32 v{33+2*d}, 0xffff0000, v{8+d}")
    for i in range(32):
        g.e(f"v_add_f32 v24, v24, v{32+i}")
        g.e(f"v_fma_f32 v25, v{32+i}, v{32+i}, v25")
    g.e("s_nop 1")
    g.e("v_add_f32_dpp v24, v24, v24 row_ror:8 row_mask:0xf bank_mask:0xf")
    g.e("v_add_f32_dpp v25, v25, v25 row_ror:8 row_mask:0xf bank_mask:0xf")
    for op in ("v_permlane16_swap_b32", "v_permlane32_swap_b32"):
        g.e("v_mov_b32 v26, v24")
        g.e("v_mov_b32 v27, v25")
        g.e("s_nop 1")
        g.e(f"{op} v24, v26")
        g.e(f"{op} v25, v27")
        g.e("s_nop 1")
        g.e("v_add_f32 v24, v24, v26")
        g.e("v_add_f32 v25, v25, v27")
    g.e("s_lshl_b32 s20, s3, 6")
    g.e("v_lshlrev_b32 v26, 3, v3")
    g.e("v_add_u32 v27, s20, v26")
    g.e("ds_write_b64 v27, v[24:25]")
    g.e("s_waitcnt lgkmcnt(0)")
    g.e("s_barrier")
    g.e("ds_read_b64 v[8:9], v26")
    g.e("ds_read_b64 v[10:11], v26 offset:64")
    g.e("ds_read_b64 v[12:13], v26 offset:128")
    g.e("ds_read_b64 v[14:15], v26 offset:192")
    g.e("s_waitcnt lgkmcnt(0)")
    g.e("v_add_f32 v8, v8, v10")
    g.e("v_add_f32 v9, v9, v11")
    g.e("v_add_f32 v12, v12, v14")
    g.e("v_add_f32 v13, v13, v15")
    g.e("v_add_f32 v8, v8, v12")
    g.e("v_add_f32 v9, v9, v13")
    g.e(f"v_mul_f32 v8, 0x{f2u(1/1024):08x}, v8")
    g.e(f"v_mul_f32 v9, 0x{f2u(1/1024):08x}, v9")
    g.e("v_fma_f32 v9, -v8, v8, v9")
    g.e("v_max_f32 v9, 0, v9")
    g.e(f"v_add_f32 v9, 0x{f2u(1e-5):08x}, v9")
    g.e("v_rsq_f32 v9, v9")
    g.e("s_nop 0")
    g.e("v_mul_f32 v8, v8, v9")
    for i in range(32):
        g.e(f"v_fma_f32 v{32+i}, v{32+i}, v9, -v8")
    for grp in range(2):
        b = 32 + 16 * grp; o = 8 + 8 * grp
        for k, e in enumerate((0, 2, 8, 10, 4, 6, 12, 14)):
            g.e(f"v_cvt_pk_bf16_f32 v{o+k}, v{b+e}, v{b+e+1}")
    g.e("s_mov_b32 s21, 8192")
    g.e("s_waitcnt vmcnt(0)")
    g.e("buffer_store_dwordx4 v[8:11], v7, s[12:15], 0 offen")
    g.e("buffer_store_dwordx4 v[12:15], v7, s[12:15], 0 offen offset:512")
    g.e("buffer_store_dwordx4 v[16:19], v7, s[12:15], s21 offen")
    g.e("buffer_store_dwordx4 v[20:23], v7, s[12:15], s21 offen offset:512")
    if STAMP:
        g.label(done + "_x")
        stamp(g, 4)
        g.e("s_waitcnt vmcnt(0)")
        stamp(g, 5)
        stamp_flush(g, 8)
    g.label(done)
    g.e("s_endpgm")
    return name, 64, (256, 256, 256)

def emit_phi(g, r, t):
    g.e(f"v_mul_f32 v{t}, 0x{f2u(LOG2E):08x}, v{r}")
    g.e(f"v_min_f32 v{t}, 0, v{t}")
    g.e(f"v_exp_f32 v{t}, v{t}")
    g.e(f"v_add_f32 v{r}, 0x{f2u(1e-6):08x}, v{r}")
    g.e(f"v_max_f32 v{r}, 0x{f2u(1e-6):08x}, v{r}")
    g.e(f"v_add_f32 v{r}, v{r}, v{t}")

def k1(g, NA=4, NS=5):
    name = "k1_qkv_kernel"
    kernel_begin(g, name)
    done = "k1_done"
    va = Alloc(4)
    vLane = 2; vT = 3
    sWv = 3
    common_entry(g, 256, vLane, sWv, done)
    g.e("s_load_dwordx2 s[4:5], s[0:1], 8")
    g.e("s_load_dwordx2 s[6:7], s[0:1], 72")
    if PF:
        g.e("s_load_dwordx2 s[48:49], s[0:1], 16")
        g.e("s_load_dwordx4 s[52:55], s[0:1], 32")
    sMt, sJ = 20, 21
    g.e("s_and_b32 s16, s2, 7")
    g.e("s_lshr_b32 s17, s2, 3")
    g.e("s_and_b32 s18, s16, 1")
    g.e("s_lshl_b32 s18, s18, 3")
    g.e("s_and_b32 s19, s17, 7")
    g.e(f"s_add_u32 s{sMt}, s18, s19")
    g.e("s_lshr_b32 s18, s16, 1")
    g.e("s_lshl_b32 s18, s18, 2")
    g.e("s_lshr_b32 s19, s17, 3")
    g.e(f"s_add_u32 s{sJ}, s18, s19")
    RB, CB, D = 1, 6, 1
    acc = [[va.get(16, 4) for cb in range(CB)]]
    araw = [va.get(4, 4) for _ in range(NA * 4 * RB)]
    bfr = [va.get(4, 4) for _ in range(D * CB)]
    vA = [va.get()]; vBl = va.get(); vBrd = va.get()
    vD = [va.get() for _ in range(6)]
    sRbg = 22
    g.e(f"s_lshl_b32 s{sRbg}, s{sMt}, 2")
    g.e(f"s_add_u32 s{sRbg}, s{sRbg}, s{sWv}")
    g.e(f"s_lshl_b32 s16, s{sRbg}, 16")
    g.e(f"v_lshlrev_b32 v{vA[0]}, 4, v{vLane}")
    g.e(f"v_add_u32 v{vA[0]}, s16, v{vA[0]}")
    emit_vBl_std(g, vBl, vLane, vT)
    emit_dma_lane_std(g, vD[0], vLane, vT, 6144, 16)
    g.e(f"s_mul_i32 s16, s{sWv}, {16*6144}")
    g.e(f"s_lshl_b32 s17, s{sJ}, 7")
    g.e("s_add_u32 s16, s16, s17")
    g.e(f"v_add_u32 v{vD[0]}, s16, v{vD[0]}")
    dma = []
    for kbs in range(2):
        for seg in range(3):
            i = kbs * 3 + seg
            if i: g.e(f"v_add_u32 v{vD[i]}, {kbs*8*6144 + seg*2048}, v{vD[0]}")
            dma.append((vD[i], (kbs * 3 + seg) * 1024, False))
    sWave = 23
    g.e(f"s_mul_i32 s{sWave}, s{sWv}, 6144")
    g.e("s_waitcnt lgkmcnt(0)")
    make_srd(g, 8, 6, 4 * MB, WS_XN)
    make_srd(g, 12, 4, 1024 * 6144)
    pfc = {}
    if PF:
        make_srd(g, 36, 48, 2 * MB)
        make_srd(g, 40, 52, 1024 * 7168)
        make_srd(g, 44, 54, 1024 * 7168)
        vP = va.get(); vJ = va.get()
        g.e("s_lshl_b32 s16, s2, 13")
        g.e(f"v_lshl_add_u32 v{vP}, v0, 5, s16")
        g.e("s_mov_b32 s33, 0")
        pfc = dict(pf=[(0, 36), (1, 40), (2, 44)], pf_junk=vJ, pf_voff=vP, pf_soff=33, pf_step=2 * MB)
    zero_regs(g, acc[0][0], 96)
    c = dict(pfc, name='k1', RB=RB, CB=CB, D=D, NA=NA, NS=NS, KT=16, acc=acc, araw=araw, bfr=bfr, vA=vA, vBl=vBl, vBrd=vBrd,
             srdA=8, srdB=12, sregs=(24, 25, 26, 27, 28, 29, 30, 31), sAprev=32, stage=24576, tileB=64 * 6144,
             dma=dma, sWave=sWave, swap=[1, 1, 0, 0, 0, 0],
             b_imm=lambda kk, cb, q: ((2 * kk + q) * 3 + (cb >> 1)) * 1024 + (cb & 1) * 512)
    gemm_core(g, c)
    make_srd(g, 36, 6, 4 * MB, WS_PQ)
    make_srd(g, 40, 6, 2 * MB, WS_KVP)
    make_srd(g, 44, 6, 64 * 1024, WS_ZP)
    ep = Alloc(araw[0])
    t0 = ep.get(4)
    for cb in range(4):
        for i in range(16):
            emit_phi(g, acc[0][cb] + i, t0 + (i & 3))
    pk = [ep.get(8, 4) for _ in range(6)]
    for cb in range(6):
        for i in range(8):
            g.e(f"v_cvt_pk_bf16_f32 v{pk[cb]+i}, v{acc[0][cb]+2*i}, v{acc[0][cb]+2*i+1}")
    g.e(f"s_lshl_b32 s16, s{sJ}, 12")
    for cb in range(2):
        for s in range(2):
            g.e(f"buffer_store_dwordx4 {vr(pk[cb]+4*s,4)}, v{vA[0]}, s[36:39], s16 offen offset:{(2*cb+s)*1024}")
    ones = ep.get(4, 4)
    for i in range(4): g.e(f"v_mov_b32 v{ones+i}, 0x3f803f80")
    kvz = [acc[0][0], acc[0][1], acc[0][2], acc[0][3]]
    zero_regs(g, kvz[0], 64)
    g.e("s_nop 1")
    for hh in range(2):
        for s in range(2):
            g.e(f"v_mfma_f32_32x32x16_bf16 {vr(kvz[hh],16)}, {vr(pk[2+hh]+4*s,4)}, {vr(pk[4+hh]+4*s,4)}, {vr(kvz[hh],16)}")
            g.e(f"v_mfma_f32_32x32x16_bf16 {vr(kvz[2+hh],16)}, {vr(pk[2+hh]+4*s,4)}, {vr(ones,4)}, {vr(kvz[2+hh],16)}")
    g.e("s_barrier")
    g.e("s_nop 15")
    vL = ep.get(); vL2 = ep.get()
    g.e(f"v_lshlrev_b32 v{vL}, 4, v{vLane}")
    g.e(f"s_lshl_b32 s16, s{sWv}, 14")
    g.e(f"v_add_u32 v{vL2}, s16, v{vL}")
    for it in range(4):
        for q in range(4):
            g.e(f"ds_write_b128 v{vL2}, {vr(kvz[it]+4*q,4)} offset:{it*4096+q*1024}")
    g.e("s_waitcnt lgkmcnt(0)")
    g.e("s_barrier")
    g.e(f"s_lshl_b32 s16, s{sWv}, 12")
    g.e(f"v_add_u32 v{vL2}, s16, v{vL}")
    for w in range(4):
        for q in range(4):
            g.e(f"ds_read_b128 {vr(kvz[w]+4*q,4)}, v{vL2} offset:{w*16384+q*1024}")
    g.e("s_waitcnt lgkmcnt(0)")
    for i in range(16):
        g.e(f"v_add_f32 v{kvz[0]+i}, v{kvz[0]+i}, v{kvz[1]+i}")
        g.e(f"v_add_f32 v{kvz[2]+i}, v{kvz[2]+i}, v{kvz[3]+i}")
        g.e(f"v_add_f32 v{kvz[0]+i}, v{kvz[0]+i}, v{kvz[2]+i}")
    g.e(f"s_and_b32 s16, s{sWv}, 1")
    g.e(f"s_lshl_b32 s17, s{sJ}, 1")
    g.e("s_add_u32 s16, s16, s17")
    g.e(f"s_lshl_b32 s17, s{sMt}, 5")
    g.e("s_add_u32 s16, s16, s17")
    g.e(f"s_cmp_ge_u32 s{sWv}, 2")
    g.e("s_cbranch_scc1 k1_z")
    g.e("s_lshl_b32 s16, s16, 12")
    for q in range(4):
        g.e(f"buffer_store_dwordx4 {vr(kvz[0]+4*q,4)}, v{vL}, s[40:43], s16 offen offset:{q*1024}")
    g.e(f"s_branch {done}" + ("_x" if STAMP else ""))
    g.label("k1_z")
    g.e("s_lshl_b32 s16, s16, 7")
    g.e(f"v_lshrrev_b32 v{vL}, 5, v{vLane}")
    g.e(f"v_lshlrev_b32 v{vL}, 6, v{vL}")
    g.e("s_mov_b32 exec_lo, 1")
    g.e("s_mov_b32 exec_hi, 1")
    for q in range(4):
        g.e(f"buffer_store_dwordx4 {vr(kvz[0]+4*q,4)}, v{vL}, s[44:47], s16 offen offset:{q*16}")
    if STAMP:
        g.label(done + "_x")
        stamp(g, 4)
        g.e("s_waitcnt vmcnt(0)")
        stamp(g, 5)
        stamp_flush(g, 8)
    g.label(done)
    g.e("s_endpgm")
    return name, va.n, (256, 256, NS * 24576)

def k2(g):
    name = "k2_att_kernel"
    kernel_begin(g, name)
    done = "k2_done"
    vLane = 2; sWv = 3
    common_entry(g, 256, vLane, sWv, done)
    g.e("s_load_dwordx2 s[6:7], s[0:1], 72")
    sH, sC = 20, 21
    g.e(f"s_lshr_b32 s{sH}, s2, 3")
    g.e(f"s_and_b32 s{sC}, s2, 7")
    g.e(f"v_lshlrev_b32 v3, 4, v{vLane}")
    g.e(f"v_lshrrev_b32 v4, 5, v{vLane}")
    g.e("v_lshlrev_b32 v4, 6, v4")
    g.e("s_waitcnt lgkmcnt(0)")
    make_srd(g, 8, 6, 2 * MB, WS_KVP)
    make_srd(g, 12, 6, 64 * 1024, WS_ZP)
    make_srd(g, 24, 6, 4 * MB, WS_PQ)
    make_srd(g, 28, 6, 4 * MB, WS_O)
    g.e(f"s_lshl_b32 s16, s{sWv}, 7")
    g.e(f"s_add_u32 s16, s16, s{sH}")
    KV = 16; Z = 80
    for i in range(4):
        g.e(f"s_add_u32 s17, s16, {32*i}")
        g.e("s_lshl_b32 s18, s17, 12")
        g.e("s_lshl_b32 s19, s17, 7")
        for q in range(4):
            g.e(f"buffer_load_dwordx4 {vr(KV+16*i+4*q,4)}, v3, s[8:11], s18 offen offset:{q*1024}")
        for q in range(4):
            g.e(f"buffer_load_dwordx4 {vr(Z+16*i+4*q,4)}, v4, s[12:15], s19 offen offset:{q*16}")
    PQ = 144
    g.e(f"s_lshl_b32 s16, s{sC}, 3")
    g.e(f"s_lshl_b32 s17, s{sWv}, 1")
    g.e("s_add_u32 s16, s16, s17")
    g.e("s_lshl_b32 s16, s16, 16")
    g.e(f"s_lshl_b32 s17, s{sH}, 11")
    g.e("s_add_u32 s22, s16, s17")
    g.e("s_add_u32 s23, s22, 65536")
    for b in range(2):
        for s in range(2):
            g.e(f"buffer_load_dwordx4 {vr(PQ+8*b+4*s,4)}, v3, s[24:27], s{22+b} offen offset:{s*1024}")
    g.e("s_waitcnt vmcnt(4)")
    for base in (KV, Z):
        for i in range(16):
            g.e(f"v_add_f32 v{base+i}, v{base+i}, v{base+16+i}")
            g.e(f"v_add_f32 v{base+32+i}, v{base+32+i}, v{base+48+i}")
            g.e(f"v_add_f32 v{base+i}, v{base+i}, v{base+32+i}")
    g.e(f"s_lshl_b32 s16, s{sWv}, 13")
    g.e("v_add_u32 v5, s16, v3")
    for k, base in enumerate((KV, Z)):
        for q in range(4):
            g.e(f"ds_write_b128 v5, {vr(base+4*q,4)} offset:{k*4096+q*1024}")
    g.e("s_waitcnt lgkmcnt(0)")
    g.e("s_barrier")
    for k, base in enumerate((KV, Z)):
        for w in range(4):
            for q in range(4):
                g.e(f"ds_read_b128 {vr(base+16*w+4*q,4)}, v3 offset:{w*8192+k*4096+q*1024}")
        g.e("s_waitcnt lgkmcnt(0)")
        for i in range(16):
            g.e(f"v_add_f32 v{base+i}, v{base+i}, v{base+16+i}")
            g.e(f"v_add_f32 v{base+32+i}, v{base+32+i}, v{base+48+i}")
            g.e(f"v_add_f32 v{base+i}, v{base+i}, v{base+32+i}")
    KF = 160; ZF = 168
    for i in range(8):
        g.e(f"v_cvt_pk_bf16_f32 v{KF+i}, v{KV+2*i}, v{KV+2*i+1}")
        g.e(f"v_cvt_pk_bf16_f32 v{ZF+i}, v{Z+2*i}, v{Z+2*i+1}")
    NUM = [16, 32]; DEN = [48, 64]
    zero_regs(g, 16, 64)
    g.e("s_waitcnt vmcnt(0)")
    for b in range(2):
        for s in range(2):
            g.e(f"v_mfma_f32_32x32x16_bf16 {vr(NUM[b],16)}, {vr(KF+4*s,4)}, {vr(PQ+8*b+4*s,4)}, {vr(NUM[b],16)}")
            g.e(f"v_mfma_f32_32x32x16_bf16 {vr(DEN[b],16)}, {vr(ZF+4*s,4)}, {vr(PQ+8*b+4*s,4)}, {vr(DEN[b],16)}")
    g.e("s_nop 15")
    for b in range(2):
        g.e(f"v_add_f32 v{DEN[b]}, 0x{f2u(1e-6):08x}, v{DEN[b]}")
        g.e(f"v_rcp_f32 v{DEN[b]}, v{DEN[b]}")
    g.e("s_nop 0")
    OUT = 80
    for b in range(2):
        for i in range(16):
            g.e(f"v_mul_f32 v{NUM[b]+i}, v{NUM[b]+i}, v{DEN[b]}")
        for i in range(8):
            g.e(f"v_cvt_pk_bf16_f32 v{OUT+8*b+i}, v{NUM[b]+2*i}, v{NUM[b]+2*i+1}")
        for s in range(2):
            g.e(f"buffer_store_dwordx4 {vr(OUT+8*b+4*s,4)}, v3, s[28:31], s{22+b} offen offset:{s*1024}")
    if STAMP:
        g.label(done + "_x")
        stamp(g, 4)
        g.e("s_waitcnt vmcnt(0)")
        stamp(g, 5)
        stamp_flush(g, 8)
    g.label(done)
    g.e("s_endpgm")
    return name, 176, (256, 256, 32768)

def k35(g, which, NA=8, NS=8):
    is3 = which == 3
    name = "k3_wo_kernel" if is3 else "k5_down_kernel"
    KT = 16 if is3 else 56
    KS = KT * 4
    kernel_begin(g, name)
    done = f"k{which}_done"
    va = Alloc(4)
    vLane = 2; vT = 3; sWv = 3
    common_entry(g, 256, vLane, sWv, done)
    g.e(f"s_load_dwordx2 s[4:5], s[0:1], {16 if is3 else 48}")
    g.e("s_load_dwordx2 s[6:7], s[0:1], 72")
    g.e(f"s_load_dwordx2 s[34:35], s[0:1], {0 if is3 else 56}")
    sMt, sNt = 20, 21
    g.e("s_and_b32 s16, s2, 7")
    g.e("s_lshr_b32 s17, s2, 3")
    g.e("s_lshr_b32 s18, s16, 1")
    g.e("s_lshl_b32 s18, s18, 2")
    g.e("s_and_b32 s19, s17, 3")
    g.e(f"s_add_u32 s{sMt}, s18, s19")
    g.e("s_and_b32 s18, s16, 1")
    g.e("s_lshl_b32 s18, s18, 3")
    g.e("s_lshr_b32 s19, s17, 2")
    g.e(f"s_add_u32 s{sNt}, s18, s19")
    RB, CB, D = 1, 2, 4
    acc = [[va.get(16, 4) for cb in range(CB)]]
    res = va.get(16, 4)
    araw = [va.get(4, 4) for _ in range(NA * 4 * RB)]
    bfr = [va.get(4, 4) for _ in range(D * CB)]
    vA = [va.get()]; vBl = va.get(); vBrd = va.get()
    vD = [va.get() for _ in range(2)]
    vH = va.get(); vR = va.get()
    sRbg = 22
    g.e(f"s_lshl_b32 s{sRbg}, s{sMt}, 2")
    g.e(f"s_add_u32 s{sRbg}, s{sRbg}, s{sWv}")
    g.e(f"s_mul_i32 s16, s{sRbg}, {KS*1024}")
    g.e(f"v_lshlrev_b32 v{vA[0]}, 4, v{vLane}")
    g.e(f"v_add_u32 v{vA[0]}, s16, v{vA[0]}")
    g.e(f"s_lshl_b32 s16, s{sRbg}, 16")
    g.e(f"s_lshl_b32 s17, s{sNt}, 12")
    g.e("s_add_u32 s16, s16, s17")
    g.e(f"v_lshlrev_b32 v{vH}, 4, v{vLane}")
    g.e(f"v_add_u32 v{vH}, s16, v{vH}")
    g.e(f"v_and_b32 v{vR}, 31, v{vLane}")
    g.e(f"v_lshlrev_b32 v{vR}, 11, v{vR}")
    g.e(f"v_lshrrev_b32 v{vT}, 5, v{vLane}")
    g.e(f"v_lshl_add_u32 v{vR}, v{vT}, 4, v{vR}")
    g.e(f"s_lshl_b32 s16, s{sRbg}, 16")
    g.e(f"s_lshl_b32 s17, s{sNt}, 7")
    g.e("s_add_u32 s16, s16, s17")
    g.e(f"v_add_u32 v{vR}, s16, v{vR}")
    emit_vBl_std(g, vBl, vLane, vT)
    emit_dma_lane_std(g, vD[0], vLane, vT, 2048, 16)
    g.e(f"s_mul_i32 s16, s{sWv}, {16*2048}")
    g.e(f"s_lshl_b32 s17, s{sNt}, 7")
    g.e("s_add_u32 s16, s16, s17")
    g.e(f"v_add_u32 v{vD[0]}, s16, v{vD[0]}")
    g.e(f"v_add_u32 v{vD[1]}, {8*2048}, v{vD[0]}")
    dma = [(vD[0], 0, False), (vD[1], 1024, False)]
    sWave = 23
    g.e(f"s_lshl_b32 s{sWave}, s{sWv}, 11")
    g.e("s_waitcnt lgkmcnt(0)")
    if is3: make_srd(g, 8, 6, 4 * MB, WS_O)
    else: make_srd(g, 8, 6, 64 * 224 * 1024, WS_ACT)
    make_srd(g, 12, 4, KT * 64 * 2048)
    make_srd(g, 36, 6, 4 * MB, WS_H)
    make_srd(g, 40, 34, 4 * MB)
    for j in range(4):
        if is3: g.e(f"buffer_load_dwordx4 {vr(res+4*j,4)}, v{vR}, s[40:43], 0 offen offset:{j*32}")
        else: g.e(f"buffer_load_dwordx4 {vr(res+4*j,4)}, v{vH}, s[36:39], 0 offen offset:{j*1024}")
    zero_regs(g, acc[0][0], 32)
    c = dict(name=f'k{which}', RB=RB, CB=CB, D=D, NA=NA, NS=NS, KT=KT, acc=acc, araw=araw, bfr=bfr, vA=vA, vBl=vBl, vBrd=vBrd,
             srdA=8, srdB=12, sregs=(24, 25, 26, 27, 28, 29, 30, 31), sAprev=32, stage=8192, tileB=64 * 2048,
             dma=dma, sWave=sWave, swap=[1, 1], bar_cb=0,
             b_imm=lambda kk, cb, q: (2 * kk + q) * 1024 + cb * 512)
    gemm_core(g, c)
    ep = Alloc(araw[0])
    t = ep.get(4)
    if is3:
        for j in range(4):
            g.e(f"v_permlane32_swap_b32 v{res+4*j}, v{res+4*j+2}")
            g.e(f"v_permlane32_swap_b32 v{res+4*j+1}, v{res+4*j+3}")
        g.e("s_nop 1")
    a0 = acc[0][0]
    for d in range(16):
        g.e(f"v_lshlrev_b32 v{t}, 16, v{res+d}")
        g.e(f"v_and_b32 v{t+1}, 0xffff0000, v{res+d}")
        g.e(f"v_add_f32 v{a0+2*d}, v{a0+2*d}, v{t}")
        g.e(f"v_add_f32 v{a0+2*d+1}, v{a0+2*d+1}, v{t+1}")
    out = ep.get(16, 4)
    for d in range(16):
        g.e(f"v_cvt_pk_bf16_f32 v{out+d}, v{a0+2*d}, v{a0+2*d+1}")
    if is3:
        for j in range(4):
            g.e(f"buffer_store_dwordx4 {vr(out+4*j,4)}, v{vH}, s[36:39], 0 offen offset:{j*1024}")
        S = ep.get(2, 2); S2 = ep.get(2, 2)
        g.e(f"v_mov_b32 v{S}, 0")
        g.e(f"v_mov_b32 v{S+1}, 0")
        for d in range(16):
            g.e(f"v_lshlrev_b32 v{t}, 16, v{out+d}")
            g.e(f"v_and_b32 v{t+1}, 0xffff0000, v{out+d}")
            g.e(f"v_add_f32 v{S}, v{S}, v{t}")
            g.e(f"v_fma_f32 v{S+1}, v{t}, v{t}, v{S+1}")
            g.e(f"v_add_f32 v{S}, v{S}, v{t+1}")
            g.e(f"v_fma_f32 v{S+1}, v{t+1}, v{t+1}, v{S+1}")
        g.e(f"v_mov_b32 v{S2}, v{S}")
        g.e(f"v_mov_b32 v{S2+1}, v{S+1}")
        g.e("s_nop 1")
        g.e(f"v_permlane32_swap_b32 v{S}, v{S2}")
        g.e(f"v_permlane32_swap_b32 v{S+1}, v{S2+1}")
        g.e("s_nop 1")
        g.e(f"v_add_f32 v{S}, v{S}, v{S2}")
        g.e(f"v_add_f32 v{S+1}, v{S+1}, v{S2+1}")
        make_srd(g, 44, 6, 256 * 1024, WS_ST)
        g.e(f"v_and_b32 v{t}, 31, v{vLane}")
        g.e(f"v_lshlrev_b32 v{t}, 7, v{t}")
        g.e(f"s_lshl_b32 s16, s{sRbg}, 12")
        g.e(f"s_lshl_b32 s17, s{sNt}, 3")
        g.e("s_add_u32 s16, s16, s17")
        g.e("s_mov_b32 exec_hi, 0")
        g.e(f"buffer_store_dwordx2 {vr(S,2)}, v{t}, s[44:47], s16 offen")
    else:
        g.e("s_nop 1")
        for j in range(4):
            g.e(f"v_permlane32_swap_b32 v{out+4*j}, v{out+4*j+2}")
            g.e(f"v_permlane32_swap_b32 v{out+4*j+1}, v{out+4*j+3}")
        g.e("s_nop 1")
        for j in range(4):
            g.e(f"buffer_store_dwordx4 {vr(out+4*j,4)}, v{vR}, s[40:43], 0 offen offset:{j*32}")
    if STAMP:
        g.label(done + "_x")
        stamp(g, 4)
        g.e("s_waitcnt vmcnt(0)")
        stamp(g, 5)
        stamp_flush(g, 8)
    g.label(done)
    g.e("s_endpgm")
    return name, va.n, (256, 256, NS * 8192)

def k4(g, NA=2, NS=5):
    name = "k4_ffn_kernel"
    kernel_begin(g, name)
    done = "k4_done"
    va = Alloc(4)
    vLane = 2; vT = 3; sWv = 3
    UOFF = 14464; STAGE = 28800
    common_entry(g, 256, vLane, sWv, done)
    g.e("s_load_dwordx4 s[36:39], s[0:1], 32")
    g.e("s_load_dwordx2 s[6:7], s[0:1], 72")
    if PF: g.e("s_load_dwordx2 s[48:49], s[0:1], 48")
    sMt, sNt = 20, 21
    g.e("s_and_b32 s16, s2, 7")
    g.e("s_lshr_b32 s17, s2, 3")
    g.e("s_and_b32 s18, s16, 1")
    g.e("s_lshl_b32 s18, s18, 2")
    g.e("s_and_b32 s19, s17, 3")
    g.e(f"s_add_u32 s{sMt}, s18, s19")
    g.e("s_lshr_b32 s18, s16, 1")
    g.e("s_lshl_b32 s18, s18, 3")
    g.e("s_lshr_b32 s19, s17, 2")
    g.e(f"s_add_u32 s{sNt}, s18, s19")
    RB, CB, D = 1, 7, 1
    acc = [[va.get(16, 4) for cb in range(CB)]]
    araw = [va.get(4, 4) for _ in range(NA * 4 * RB)]
    anorm = [va.get(4, 4) for _ in range(2)]
    bfr = [va.get(4, 4) for _ in range(D * CB)]
    tmp = [va.get() for _ in range(4)]
    vA = [va.get()]; vBl = va.get(); vBrd = va.get()
    vD = [va.get() for _ in range(4)]
    vRs = va.get(); vMs = va.get(); vS = va.get()
    sRbg = 22
    g.e(f"s_lshl_b32 s{sRbg}, s{sMt}, 3")
    g.e(f"s_add_u32 s{sRbg}, s{sRbg}, s{sWv}")
    g.e(f"s_lshl_b32 s16, s{sRbg}, 16")
    g.e(f"v_lshlrev_b32 v{vA[0]}, 4, v{vLane}")
    g.e(f"v_add_u32 v{vA[0]}, s16, v{vA[0]}")
    g.e(f"v_and_b32 v{vS}, 31, v{vLane}")
    g.e(f"v_lshlrev_b32 v{vS}, 7, v{vS}")
    g.e(f"s_lshl_b32 s16, s{sRbg}, 12")
    g.e(f"v_add_u32 v{vS}, s16, v{vS}")
    g.e(f"v_lshrrev_b32 v{vT}, 5, v{vLane}")
    g.e(f"v_bfe_u32 v{vBl}, v{vLane}, 2, 2")
    g.e(f"v_lshl_add_u32 v{vT}, v{vT}, 2, v{vBl}")
    g.e(f"v_mul_u32_u24 v{vBl}, 224, v{vT}")
    g.e(f"v_bfe_u32 v{vT}, v{vLane}, 4, 1")
    g.e(f"v_mul_u32_u24 v{vT}, {UOFF}, v{vT}")
    g.e(f"v_add_u32 v{vBl}, v{vBl}, v{vT}")
    g.e(f"v_and_b32 v{vT}, 3, v{vLane}")
    g.e(f"v_lshl_add_u32 v{vBl}, v{vT}, 3, v{vBl}")
    g.e(f"s_lshr_b32 s16, s{sWv}, 1")
    g.e(f"s_mul_i32 s17, s16, {16*7168}")
    g.e(f"s_mul_i32 s18, s{sNt}, 224")
    g.e("s_add_u32 s17, s17, s18")
    for i in range(4):
        g.e(f"v_add_u32 v{tmp[0]}, {64*i}, v{vLane}")
        g.e(f"v_mul_u32_u24 v{tmp[1]}, 4682, v{tmp[0]}")
        g.e(f"v_lshrrev_b32 v{tmp[1]}, 16, v{tmp[1]}")
        g.e(f"v_mul_u32_u24 v{tmp[2]}, 14, v{tmp[1]}")
        g.e(f"v_sub_u32 v{tmp[2]}, v{tmp[0]}, v{tmp[2]}")
        g.e(f"v_mul_u32_u24 v{tmp[1]}, 7168, v{tmp[1]}")
        g.e(f"v_lshl_add_u32 v{tmp[1]}, v{tmp[2]}, 4, v{tmp[1]}")
        g.e(f"v_add_u32 v{vD[i]}, s17, v{tmp[1]}")
    dma = [(vD[i], i * 1024, i == 3) for i in range(4)]
    sWave = 23
    g.e(f"s_mul_i32 s{sWave}, s16, 3584")
    g.e(f"s_and_b32 s18, s{sWv}, 1")
    g.e(f"s_mul_i32 s19, s18, {UOFF}")
    g.e(f"s_add_u32 s{sWave}, s{sWave}, s19")
    g.e("s_waitcnt lgkmcnt(0)")
    g.e("s_cmp_eq_u32 s18, 0")
    g.e("s_cselect_b32 s4, s36, s38")
    g.e("s_cselect_b32 s5, s37, s39")
    make_srd(g, 8, 6, 4 * MB, WS_H)
    make_srd(g, 12, 4, 1024 * 7168)
    make_srd(g, 40, 6, 256 * 1024, WS_ST)
    make_srd(g, 44, 6, 64 * 224 * 1024, WS_ACT)
    pfc = {}
    if PF:
        make_srd(g, 52, 48, 3584 * 2048)
        vP = va.get(); vJ = va.get()
        g.e("s_lshl_b32 s16, s2, 12")
        g.e(f"v_lshl_add_u32 v{vP}, v0, 3, s16")
        g.e("s_mov_b32 s33, 0")
        pfc = dict(pf=[(0, 52)], pf_junk=vJ, pf_voff=vP, pf_soff=33, pf_step=1 * MB)
    st0 = acc[0][0]
    for j in range(8):
        g.e(f"buffer_load_dwordx4 {vr(st0+4*j,4)}, v{vS}, s[40:43], 0 offen offset:{j*16}")
    def hook(st):
        for j in (16, 8, 4, 2):
            for i in range(j):
                st.i(f"v_add_f32 v{st0+i}, v{st0+i}, v{st0+j+i}")
        st.i(f"v_mul_f32 v{st0}, 0x{f2u(1/1024):08x}, v{st0}")
        st.i(f"v_mul_f32 v{st0+1}, 0x{f2u(1/1024):08x}, v{st0+1}")
        st.i(f"v_fma_f32 v{st0+1}, -v{st0}, v{st0}, v{st0+1}")
        st.i(f"v_max_f32 v{st0+1}, 0, v{st0+1}")
        st.i(f"v_add_f32 v{st0+1}, 0x{f2u(1e-5):08x}, v{st0+1}")
        st.i(f"v_rsq_f32 v{vRs}, v{st0+1}")
        st.i("s_nop 0")
        st.i(f"v_mul_f32 v{vMs}, v{st0}, v{vRs}")
        st.i(f"v_sub_f32 v{vMs}, 0, v{vMs}")
        for i in range(112): st.i(f"v_mov_b32 v{st0+i}, 0")
    c = dict(pfc, name='k4', RB=RB, CB=CB, D=D, NA=NA, NS=NS, KT=16, acc=acc, araw=araw, bfr=bfr, vA=vA, vBl=vBl, vBrd=vBrd,
             anorm=anorm, norm=True, nrm=[(vRs, vMs)], tmp=tmp, hook_norm=hook,
             srdA=8, srdB=12, sregs=(24, 25, 26, 27, 28, 29, 30, 31), sAprev=32, stage=STAGE, tileB=64 * 7168,
             dma=dma, sWave=sWave, swap=[1] * 7,
             b_imm=lambda kk, cb, q: (16 * kk + 8 * q) * 224 + cb * 32)
    gemm_core(g, c)
    C1 = -2.0 * 0.7978845608028654 * LOG2E
    C2 = C1 * 0.044715
    g.e(f"s_mov_b32 s16, 0x{f2u(C1):08x}")
    g.e(f"s_mov_b32 s17, 0x{f2u(C2):08x}")
    g.e(f"v_mov_b32 v{vT}, s16")
    ep = Alloc(araw[0])
    T = ep.get(8); O = [ep.get(4, 4) for _ in range(2)]
    vO = ep.get()
    g.e(f"s_mul_i32 s18, s{sRbg}, 224")
    g.e(f"s_mul_i32 s19, s{sNt}, 7")
    g.e("s_add_u32 s18, s18, s19")
    g.e("s_lshl_b32 s18, s18, 10")
    g.e(f"v_lshlrev_b32 v{vO}, 4, v{vLane}")
    g.e(f"v_add_u32 v{vO}, s18, v{vO}")
    g.e("s_mov_b32 s19, 4096")
    for cb in range(CB):
        a = acc[0][cb]
        for i in range(8): g.e(f"v_mul_f32 v{T+i}, v{a+i}, v{a+i}")
        for i in range(8): g.e(f"v_fma_f32 v{T+i}, v{T+i}, s17, v{vT}")
        for i in range(8): g.e(f"v_mul_f32 v{T+i}, v{T+i}, v{a+i}")
        for i in range(8): g.e(f"v_exp_f32 v{T+i}, v{T+i}")
        for i in range(8): g.e(f"v_mul_f32 v{a+i}, v{a+i}, v{a+8+i}")
        for i in range(8): g.e(f"v_add_f32 v{T+i}, 1.0, v{T+i}")
        for i in range(8): g.e(f"v_rcp_f32 v{T+i}, v{T+i}")
        g.e("s_nop 0")
        for i in range(8): g.e(f"v_mul_f32 v{a+i}, v{a+i}, v{T+i}")
        o = O[cb & 1]
        for i in range(4): g.e(f"v_cvt_pk_bf16_f32 v{o+i}, v{a+2*i}, v{a+2*i+1}")
        if cb < 4: g.e(f"buffer_store_dwordx4 {vr(o,4)}, v{vO}, s[44:47], 0 offen offset:{cb*1024}")
        else: g.e(f"buffer_store_dwordx4 {vr(o,4)}, v{vO}, s[44:47], s19 offen offset:{(cb-4)*1024}")
    if STAMP:
        g.label(done + "_x")
        stamp(g, 4)
        g.e("s_waitcnt vmcnt(0)")
        stamp(g, 5)
        stamp_flush(g, 8)
    g.label(done)
    g.e("s_endpgm")
    return name, va.n, (256, 512, NS * STAGE)

def main(out):
    g = G()
    ks = []
    ks.append(k0(g))
    ks.append(k1(g))
    ks.append(k2(g))
    ks.append(k35(g, 3))
    ks.append(k4(g))
    ks.append(k35(g, 5))
    head = []
    for name, nv, (grid, blk, lds) in ks:
        head.append(f"; @launch kernel={name} grid=({grid},1,1) block=({blk},1,1) lds={lds}")
    head.append('.amdgcn_target "amdgcn-amd-amdhsa--gfx950"')
    head.append(".text")
    txt = "\n".join(head) + "\n" + g.text()
    txt += '.section .rodata,"a"\n'
    for name, nv, _ in ks:
        txt += ".p2align 6\n" + kernel_desc(name, nv)
    open(out, "w").write(txt)
    for name, nv, l in ks: print(name, "vgpr", nv, l)

if __name__ == "__main__":
    main(sys.argv[1] if len(sys.argv) > 1 else f"cdna_kernels/{NAME}.s")
```

```python
import sys, struct

NAME = "sequential_preLN__linear_attn_block__geglu_ffn__prompt"
MB = 1 << 20
WS_XN = 0 * MB
WS_PQ = 8 * MB
WS_KVP = 12 * MB
WS_ZP = 14 * MB
WS_O = 16 * MB
WS_H = 20 * MB
WS_ST = 24 * MB
WS_ACT = 32 * MB
WS_BYTES = 48 * MB
OOB = 0x7f000000

def f2u(x):
    return struct.unpack("<I", struct.pack("<f", x))[0]

class G:
    def __init__(self):
        self.lines = []
        self.uid = 0
    def e(self, s):
        self.lines.append("    " + s)
    def label(self, s):
        self.lines.append(s + ":")
    def raw(self, s):
        self.lines.append(s)
    def newlabel(self, p="L"):
        self.uid += 1
        return f"{p}_{self.uid}"
    def text(self):
        return "\n".join(self.lines) + "\n"

def vr(b, n=1):
    return f"v{b}" if n == 1 else f"v[{b}:{b+n-1}]"
def sr(b, n=1):
    return f"s{b}" if n == 1 else f"s[{b}:{b+n-1}]"

class Alloc:
    def __init__(self, start=0, limit=256):
        self.n = start; self.limit = limit
    def get(self, cnt=1, align=1):
        self.n = (self.n + align - 1) // align * align
        b = self.n; self.n += cnt
        assert self.n <= self.limit, f"out of regs {self.n}"
        return b

def kernel_begin(g, name):
    g.raw(f".globl {name}")
    g.raw(".p2align 8")
    g.raw(f".type {name},@function")
    g.label(name)

def kernel_desc(name, nv, ns=96):
    nv = max(nv, 8)
    acc = (nv + 3) // 4 * 4
    return f""".amdhsa_kernel {name}
  .amdhsa_next_free_vgpr {nv}
  .amdhsa_next_free_sgpr {ns}
  .amdhsa_accum_offset {acc}
  .amdhsa_group_segment_fixed_size 0
  .amdhsa_kernarg_size 80
  .amdhsa_user_sgpr_count 2
  .amdhsa_user_sgpr_kernarg_segment_ptr 1
  .amdhsa_system_sgpr_workgroup_id_x 1
.end_amdhsa_kernel
"""

import os
PF = os.environ.get("GNOPF", "") == ""
CFG = dict(k1=(2, 4, 2), k3=(2, 16, 2), k4=(2, 2, 2), k5=(2, 8, 2))
for kv in os.environ.get("GCFG", "").split(";"):
    if kv:
        k_, v_ = kv.split("="); CFG[k_] = tuple(int(x) for x in v_.split(","))
STAMP = os.environ.get("GSTAMP", "") != ""
def stamp(g, i):
    if not STAMP: return
    g.e(f"s_memtime s[{60+2*i}:{61+2*i}]")
    g.e("s_waitcnt lgkmcnt(0)")
def stamp_flush(g, n):
    if not STAMP: return
    L = g.newlabel("Lst")
    g.e("s_cmp_lg_u32 s2, 5")
    g.e(f"s_cbranch_scc1 {L}")
    g.e("s_mov_b64 exec, -1")
    g.e("s_load_dwordx2 s[80:81], s[0:1], 64")
    g.e("s_waitcnt lgkmcnt(0)")
    g.e("s_mov_b32 s82, 256")
    g.e("s_mov_b32 s83, 0x00020000")
    g.e("s_lshl_b32 s84, s3, 5")
    g.e("v_mov_b32 v0, s84")
    for i in range(n):
        g.e(f"s_sub_u32 s85, s{60+2*i}, s60")
        g.e("v_mov_b32 v1, s85")
        g.e(f"buffer_store_dword v1, v0, s[80:83], 0 offen offset:{4*i}")
    g.label(L)

def make_srd(g, d, base, nbytes, add=0):
    if add:
        g.e(f"s_add_u32 s{d}, s{base}, {add}")
        g.e(f"s_addc_u32 s{d+1}, s{base+1}, 0")
    else:
        g.e(f"s_mov_b32 s{d}, s{base}")
        g.e(f"s_mov_b32 s{d+1}, s{base+1}")
    g.e(f"s_mov_b32 s{d+2}, {nbytes}")
    g.e(f"s_mov_b32 s{d+3}, 0x00020000")

import os
DBG = set(os.environ.get("GDBG", "").split(","))
class Stream:
    def __init__(self):
        self.items = []
        self.vm = []; self.lg = []
        self.vm_done = 0; self.lg_done = 0
    def i(self, text):
        self.items.append(('i', text))
    def vmop(self, text, oid):
        self.items.append(('i', text)); self.vm.append(oid)
    def lgop(self, text, oid):
        self.items.append(('i', text)); self.lg.append(oid)
    def need(self, kind, oids):
        lst = self.vm if kind == 'vm' else self.lg
        done = self.vm_done if kind == 'vm' else self.lg_done
        idx = max(lst.index(o) for o in oids)
        if idx < done:
            self.items.append(['w', kind, None]); return
        n = len(lst) - 1 - idx
        cap = 63 if kind == 'vm' else 15
        n = min(n, cap)
        self.items.append(['w', kind, n])
        if kind == 'vm': self.vm_done = len(lst) - n
        else: self.lg_done = len(lst) - n

def gemm_core(g, c):
    RB, CB, D, NA, NS, KT = c['RB'], c['CB'], c['D'], c['NA'], c['NS'], c['KT']
    norm = c.get('norm', False)
    acc = c['acc']; araw = c['araw']; bfr = c['bfr']; anorm = c.get('anorm')
    vA = c['vA']; vBl = c['vBl']; vBrd = c['vBrd']
    srdA = c['srdA']; srdB = c['srdB']
    sA, sAe, sB, sBe, sW, sWw, sR, sCnt = c['sregs']
    stage = c['stage']; tileB = c['tileB']
    dma = c['dma']
    sWave = c['sWave']
    swap = c['swap']; b_imm = c['b_imm']
    bar_cb = c.get('bar_cb', min(1, CB - 1))
    tmp = c.get('tmp')
    U = NA
    PB = NS - 1
    P = c.get('P', 2)
    R = c.get('R', U)
    rate = c.get('rate', 2)
    assert (KT - R) % U == 0 and R % U == 0 and R >= 1
    cur = {'A': None, 'B': None}
    bq = []

    def a_reg(t, kk, rb): return araw[((t % NA) * 4 + kk) * RB + rb]
    def b_reg(s, cb): return bfr[(s % D) * CB + cb]
    def n_reg(s, rb): return anorm[(s & 1) * RB + rb]

    def a_const(st, tt, kk, rb):
        if tt >= KT: return
        if cur['A'] != tt:
            st.i(f"s_mov_b32 s{sAe}, {tt*4096}"); cur['A'] = tt
        st.vmop(f"buffer_load_dwordx4 {vr(a_reg(tt,kk,rb),4)}, v{vA[rb]}, {sr(srdA,4)}, s{sAe} offen offset:{kk*1024}", ('A', tt, kk, rb))
    def d_const(st, tt, i):
        if tt >= KT: return
        vo, lc, half = dma[i]
        if cur['B'] != tt:
            st.i(f"s_mov_b32 s{sBe}, {tt*tileB}"); cur['B'] = tt
        st.i(f"s_add_u32 m0, s{sWave}, {(tt % NS) * stage + lc}")
        if half: st.i("s_mov_b32 exec_hi, 0")
        else: st.i("s_nop 0")
        st.vmop(f"buffer_load_dwordx4 v{vo}, {sr(srdB,4)}, s{sBe} offen lds", ('D', tt, i))
        if half: st.i("s_mov_b32 exec_hi, -1")
    def issue_reads(st, ts, cb):
        if ts >= 4 * KT and R == KT: return
        tt, tk = divmod(ts, 4)
        for q in range(2):
            st.lgop(f"ds_read_b64_tr_b16 {vr(b_reg(ts,cb)+2*q,2)}, v{vBrd} offset:{b_imm(tk,cb,q)}", ('R', ts, cb, q))
    def norm_fill(st, s1):
        out = []
        if s1 >= 4 * KT and R == KT: return out
        nt_, nk_ = divmod(s1, 4)
        for rb in range(RB):
            src = a_reg(nt_, nk_, rb); dst = n_reg(s1, rb)
            rs, ms = c['nrm'][rb]
            for d in range(4):
                t0, t1 = tmp[(d & 1) * 2], tmp[(d & 1) * 2 + 1]
                def f(src=src, dst=dst, d=d, t0=t0, t1=t1, rs=rs, ms=ms, nt_=nt_, nk_=nk_, rb=rb):
                    if d == 0: st.need('vm', [('A', nt_, nk_, rb)])
                    st.i(f"v_lshlrev_b32 v{t0}, 16, v{src+d}")
                    st.i(f"v_and_b32 v{t1}, 0xffff0000, v{src+d}")
                    st.i(f"v_fma_f32 v{t0}, v{t0}, v{rs}, v{ms}")
                    st.i(f"v_fma_f32 v{t1}, v{t1}, v{rs}, v{ms}")
                    st.i(f"v_cvt_pk_bf16_f32 v{dst+d}, v{t0}, v{t1}")
                out.append(f)
        return out

    def gen_tile(st, t):
        peeled = t < R
        if not peeled:
            st.i(f"s_cmp_lt_u32 s{sA}, {KT*4096}")
            st.i(f"s_cselect_b32 s{sAe}, s{sA}, {OOB}")
            st.i(f"s_add_u32 s{sA}, s{sA}, 4096")
        barstep = 4 - D
        for kk in range(4):
            s = 4 * t + kk
            fill = []
            ps = s if norm else s - 1
            pt, pk = divmod(ps, 4)
            if ps >= 0:
                for rb in range(RB):
                    tgt = pt + NA
                    if peeled:
                        bq.append(lambda tgt=tgt, pk=pk, rb=rb: a_const(st, tgt, pk, rb))
                    else:
                        so = f"s{sAe}" if pt == t else f"s{c['sAprev']}"
                        def f(rb=rb, pt=pt, pk=pk, tgt=tgt, so=so):
                            st.vmop(f"buffer_load_dwordx4 {vr(a_reg(pt,pk,rb),4)}, v{vA[rb]}, {sr(srdA,4)}, {so} offen offset:{pk*1024}", ('A', tgt, pk, rb))
                        fill.append(f)
            nfill = norm_fill(st, s + 1) if norm else []
            deferred = []
            bar_done = kk > barstep
            queue = fill + nfill
            per = -(-len(queue) // CB) if queue else 0
            for cb in range(CB):
                st.need('lg', [('R', s, cb, 0), ('R', s, cb, 1)])
                if cb == 0 and not norm:
                    st.need('vm', [('A', t, kk, rb) for rb in range(RB)])
                for rb in range(RB):
                    a = n_reg(s, rb) if norm else a_reg(t, kk, rb)
                    b = b_reg(s, cb)
                    x, y = (b, a) if swap[cb] else (a, b)
                    st.i(f"v_mfma_f32_32x32x16_bf16 {vr(acc[rb][cb],16)}, {vr(x,4)}, {vr(y,4)}, {vr(acc[rb][cb],16) if s else 0}")
                if kk == barstep and cb == bar_cb:
                    last = (R == KT and t == KT - 1)
                    if not last:
                        st.need('vm', [('D', t + 1, i) for i in range(len(dma))])
                        st.i("s_barrier")
                    if peeled:
                        if not last: st.i(f"v_add_u32 v{vBrd}, {((t + 1) % NS) * stage}, v{vBl}")
                    else:
                        st.i(f"s_add_u32 s{sR}, s{sR}, {stage}")
                        st.i(f"s_cmp_lt_u32 s{sR}, {NS*stage}")
                        st.i(f"s_cselect_b32 s{sR}, s{sR}, 0")
                        st.i(f"v_add_u32 v{vBrd}, s{sR}, v{vBl}")
                    bar_done = True
                    if t < R - 1 or R == KT:
                        for i in range(len(dma)):
                            bq.append(lambda tt=t + PB, i=i: d_const(st, tt, i))
                    else:
                        if t == R - 1:
                            while bq: bq.pop(0)()
                            st.i(f"s_mov_b32 s{sB}, {(t + PB) * tileB}")
                            st.i(f"s_mov_b32 s{sW}, {((t + PB) % NS) * stage}")
                            st.i(f"s_mov_b32 s{sR}, {((t + 1) % NS) * stage}")
                        st.i(f"s_cmp_lt_u32 s{sB}, {KT*tileB}")
                        st.i(f"s_cselect_b32 s{sBe}, s{sB}, {OOB}")
                        st.i(f"s_add_u32 s{sB}, s{sB}, {tileB}")
                        st.i(f"s_add_u32 s{sWw}, s{sW}, s{sWave}")
                        st.i(f"s_add_u32 s{sW}, s{sW}, {stage}")
                        st.i(f"s_cmp_lt_u32 s{sW}, {NS*stage}")
                        st.i(f"s_cselect_b32 s{sW}, s{sW}, 0")
                        c['_dmaq'] = [(t + PB, i) for i in range(len(dma))]
                    for dcb in deferred: issue_reads(st, s + D, dcb)
                    deferred = []
                crosses = (kk + D) >= 4
                if crosses and not bar_done:
                    deferred.append(cb)
                else:
                    issue_reads(st, s + D, cb)
                for _ in range(per):
                    if queue: queue.pop(0)()
                for _ in range(rate):
                    if bq: bq.pop(0)()
                if kk == 2 and cb == CB - 1:
                    for (pt_, psrd) in c.get('pf', []):
                        if pt_ == t % U:
                            st.vmop(f"buffer_load_dword v{c['pf_junk']}, v{c['pf_voff']}, {sr(psrd,4)}, s{c['pf_soff']} offen", ('P', t, psrd))
                    if c.get('pf') and t % U == U - 1:
                        st.i(f"s_add_u32 s{c['pf_soff']}, s{c['pf_soff']}, {c['pf_step']}")
                if c.get('_dmaq'):
                    tt, i = c['_dmaq'].pop(0)
                    vo, lc, half = dma[i]
                    st.i(f"s_add_u32 m0, s{sWw}, {lc}")
                    if half: st.i("s_mov_b32 exec_hi, 0")
                    else: st.i("s_nop 0")
                    st.vmop(f"buffer_load_dwordx4 v{vo}, {sr(srdB,4)}, s{sBe} offen lds", ('D', tt, i))
                    if half: st.i("s_mov_b32 exec_hi, -1")
            while queue: queue.pop(0)()
            if kk == 3 and not peeled:
                st.i(f"s_mov_b32 s{c['sAprev']}, s{sAe}")
        if t == R - 1 and R < KT:
            while bq: bq.pop(0)()
            st.i(f"s_mov_b32 s{sA}, {(R + NA) * 4096}")
            st.i(f"s_mov_b32 s{c['sAprev']}, {(R - 1 + NA) * 4096 if R - 1 + NA < KT else OOB}")
            st.i(f"s_mov_b32 s{sCnt}, {(KT - R) // U}")

    st = Stream()
    c['_dmaq'] = []
    for tt in range(P):
        for i in range(len(dma)): d_const(st, tt, i)
        for kk in range(4):
            for rb in range(RB): a_const(st, tt, kk, rb)
        if tt == 0 and c.get('hook_early'): c['hook_early'](st)
    for tt in range(P, max(PB, NA)):
        if tt < PB:
            for i in range(len(dma)): bq.append(lambda tt=tt, i=i: d_const(st, tt, i))
        if tt < NA:
            for kk in range(4):
                for rb in range(RB): bq.append(lambda tt=tt, kk=kk, rb=rb: a_const(st, tt, kk, rb))
    if c.get('hook_pre'): c['hook_pre'](st)
    if norm:
        for f in norm_fill(st, 0): f()
    if STAMP: st.i("s_memtime s[72:73]"); st.i("s_waitcnt lgkmcnt(0)")
    st.need('vm', [('D', 0, i) for i in range(len(dma))])
    st.i("s_barrier")
    if STAMP: st.i("s_memtime s[74:75]"); st.i("s_waitcnt lgkmcnt(0)")
    st.i(f"v_mov_b32 v{vBrd}, v{vBl}")
    for s in range(D):
        for cb in range(CB): issue_reads(st, s, cb)
    n_pro = len(st.items)
    for t in range(R): gen_tile(st, t)
    n_peel = len(st.items)
    dbg = DBG if c.get('name') in DBG else set()
    def out(items, loop=False):
        for it in items:
            if it[0] == 'i':
                t_ = it[1]
                if loop:
                    if 'nodma' in dbg and t_.endswith('lds'): continue
                    if 'noaload' in dbg and t_.startswith('buffer_load') and not t_.endswith('lds'): continue
                    if 'nobar' in dbg and t_ == 's_barrier': continue
                    if 'nomfma' in dbg and t_.startswith('v_mfma'): continue
                    if 'nonorm' in dbg and (t_.startswith('v_lshlrev_b32') or t_.startswith('v_and_b32') or t_.startswith('v_fma') or t_.startswith('v_cvt_pk')): continue
                    if 'noread' in dbg and t_.startswith('ds_read'): continue
                g.e(it[1])
            elif it[2] is not None:
                g.e(f"s_waitcnt {'vmcnt' if it[1]=='vm' else 'lgkmcnt'}({it[2]})")
    if R < KT:
        for t in range(R, R + U): gen_tile(st, t)
        n_b1 = len(st.items)
        for t in range(R + U, R + 2 * U): gen_tile(st, t)
        n_b2 = len(st.items)
        b1 = st.items[n_peel:n_b1]; b2 = st.items[n_b1:n_b2]
        assert len(b1) == len(b2), (len(b1), len(b2))
        for x, y in zip(b1, b2):
            assert x[0] == y[0]
            if x[0] == 'w':
                vals = [v for v in (x[2], y[2]) if v is not None]
                x[2] = min(vals) if vals else None
            else:
                assert x[1] == y[1], (x[1], y[1])
    out(st.items[:n_pro])
    stamp(g, 1)
    out(st.items[n_pro:n_peel], True)
    if R < KT:
        L = g.newlabel("Lloop")
        g.label(L)
        out(b1, True)
        g.e(f"s_sub_u32 s{sCnt}, s{sCnt}, 1")
        g.e(f"s_cmp_lg_u32 s{sCnt}, 0")
        g.e(f"s_cbranch_scc1 {L}")
    stamp(g, 2)
    g.e("s_waitcnt vmcnt(0) lgkmcnt(0)")
    g.e("s_nop 15")
    stamp(g, 3)

LOG2E = 1.4426950408889634

def common_entry(g, nwg, vLane, sWv, done):
    g.e(f"s_cmp_ge_u32 s2, {nwg}")
    g.e(f"s_cbranch_scc1 {done}")
    g.e(f"v_and_b32 v{vLane}, 63, v0")
    g.e(f"v_lshrrev_b32 v1, 6, v0")
    g.e("s_nop 0")
    g.e(f"v_readfirstlane_b32 s{sWv}, v1")
    stamp(g, 0)

def emit_vBl_std(g, vBl, vLane, t):
    g.e(f"v_lshrrev_b32 v{vBl}, 5, v{vLane}")
    g.e(f"v_lshlrev_b32 v{vBl}, 8, v{vBl}")
    g.e(f"v_bfe_u32 v{t}, v{vLane}, 2, 2")
    g.e(f"v_lshl_add_u32 v{vBl}, v{t}, 6, v{vBl}")
    g.e(f"v_bfe_u32 v{t}, v{vLane}, 4, 1")
    g.e(f"v_lshl_add_u32 v{vBl}, v{t}, 5, v{vBl}")
    g.e(f"v_and_b32 v{t}, 3, v{vLane}")
    g.e(f"v_lshl_add_u32 v{vBl}, v{t}, 3, v{vBl}")

def emit_dma_lane_std(g, vD, vLane, t, ldb, sT):
    g.e(f"v_bfe_u32 v{t}, v{vLane}, 2, 3")
    g.e(f"s_mov_b32 s{sT}, {ldb}")
    g.e(f"v_mul_lo_u32 v{vD}, v{t}, s{sT}")
    g.e(f"v_lshrrev_b32 v{t}, 5, v{vLane}")
    g.e(f"v_lshl_add_u32 v{vD}, v{t}, 6, v{vD}")
    g.e(f"v_and_b32 v{t}, 3, v{vLane}")
    g.e(f"v_lshl_add_u32 v{vD}, v{t}, 4, v{vD}")

def zero_regs(g, base, n):
    for i in range(n): g.e(f"v_mov_b32 v{base+i}, 0")

def k0(g):
    name = "k0_ln_kernel"
    kernel_begin(g, name)
    done = "k0_done"
    sWv = 3
    common_entry(g, 256, 2, sWv, done)
    g.e("s_load_dwordx4 s[4:7], s[0:1], 0")
    g.e("s_load_dwordx2 s[28:29], s[0:1], 72")
    g.e("v_and_b32 v3, 7, v2")
    g.e("v_lshrrev_b32 v4, 3, v2")
    g.e("s_lshl_b32 s16, s2, 3")
    g.e("v_add_u32 v5, s16, v3")
    g.e("v_lshlrev_b32 v5, 11, v5")
    g.e("s_lshl_b32 s17, s3, 4")
    g.e("v_add_u32 v6, s17, v4")
    g.e("v_lshl_add_u32 v5, v6, 5, v5")
    g.e("s_waitcnt lgkmcnt(0)")
    make_srd(g, 8, 4, 4 * MB)
    make_srd(g, 12, 28, 4 * MB, WS_XN)
    g.e("buffer_load_dwordx4 v[8:11], v5, s[8:11], 0 offen")
    g.e("buffer_load_dwordx4 v[12:15], v5, s[8:11], 0 offen offset:16")
    g.e("buffer_load_dwordx4 v[16:19], v5, s[8:11], 0 offen offset:256")
    g.e("buffer_load_dwordx4 v[20:23], v5, s[8:11], 0 offen offset:272")
    if PF:
        make_srd(g, 24, 6, 1024 * 6144)
        g.e("s_lshl_b32 s22, s2, 14")
        g.e("v_lshl_add_u32 v28, v0, 6, s22")
        g.e(f"s_mov_b32 s23, {4*MB}")
        g.e("buffer_load_dword v29, v28, s[24:27], 0 offen")
        g.e("buffer_load_dword v30, v28, s[24:27], s23 offen")
    g.e("s_lshr_b32 s18, s2, 2")
    g.e("s_lshl_b32 s18, s18, 16")
    g.e("s_and_b32 s19, s2, 3")
    g.e("s_lshl_b32 s19, s19, 7")
    g.e("s_add_u32 s18, s18, s19")
    g.e("v_lshlrev_b32 v7, 10, v6")
    g.e("v_lshl_add_u32 v7, v3, 4, v7")
    g.e("v_add_u32 v7, s18, v7")
    g.e("v_mov_b32 v24, 0")
    g.e("v_mov_b32 v25, 0")
    g.e(f"s_waitcnt vmcnt({2 if PF else 0})")
    for d in range(16):
        g.e(f"v_lshlrev_b32 v{32+2*d}, 16, v{8+d}")
        g.e(f"v_and_b32 v{33+2*d}, 0xffff0000, v{8+d}")
    for i in range(32):
        g.e(f"v_add_f32 v24, v24, v{32+i}")
        g.e(f"v_fma_f32 v25, v{32+i}, v{32+i}, v25")
    g.e("s_nop 1")
    g.e("v_add_f32_dpp v24, v24, v24 row_ror:8 row_mask:0xf bank_mask:0xf")
    g.e("v_add_f32_dpp v25, v25, v25 row_ror:8 row_mask:0xf bank_mask:0xf")
    for op in ("v_permlane16_swap_b32", "v_permlane32_swap_b32"):
        g.e("v_mov_b32 v26, v24")
        g.e("v_mov_b32 v27, v25")
        g.e("s_nop 1")
        g.e(f"{op} v24, v26")
        g.e(f"{op} v25, v27")
        g.e("s_nop 1")
        g.e("v_add_f32 v24, v24, v26")
        g.e("v_add_f32 v25, v25, v27")
    g.e("s_lshl_b32 s20, s3, 6")
    g.e("v_lshlrev_b32 v26, 3, v3")
    g.e("v_add_u32 v27, s20, v26")
    g.e("ds_write_b64 v27, v[24:25]")
    g.e("s_waitcnt lgkmcnt(0)")
    g.e("s_barrier")
    g.e("ds_read_b64 v[8:9], v26")
    g.e("ds_read_b64 v[10:11], v26 offset:64")
    g.e("ds_read_b64 v[12:13], v26 offset:128")
    g.e("ds_read_b64 v[14:15], v26 offset:192")
    g.e("s_waitcnt lgkmcnt(0)")
    g.e("v_add_f32 v8, v8, v10")
    g.e("v_add_f32 v9, v9, v11")
    g.e("v_add_f32 v12, v12, v14")
    g.e("v_add_f32 v13, v13, v15")
    g.e("v_add_f32 v8, v8, v12")
    g.e("v_add_f32 v9, v9, v13")
    g.e(f"v_mul_f32 v8, 0x{f2u(1/1024):08x}, v8")
    g.e(f"v_mul_f32 v9, 0x{f2u(1/1024):08x}, v9")
    g.e("v_fma_f32 v9, -v8, v8, v9")
    g.e("v_max_f32 v9, 0, v9")
    g.e(f"v_add_f32 v9, 0x{f2u(1e-5):08x}, v9")
    g.e("v_rsq_f32 v9, v9")
    g.e("s_nop 0")
    g.e("v_mul_f32 v8, v8, v9")
    for i in range(32):
        g.e(f"v_fma_f32 v{32+i}, v{32+i}, v9, -v8")
    for grp in range(2):
        b = 32 + 16 * grp; o = 8 + 8 * grp
        for k, e in enumerate((0, 2, 8, 10, 4, 6, 12, 14)):
            g.e(f"v_cvt_pk_bf16_f32 v{o+k}, v{b+e}, v{b+e+1}")
    g.e("s_mov_b32 s21, 8192")
    g.e("s_waitcnt vmcnt(0)")
    g.e("buffer_store_dwordx4 v[8:11], v7, s[12:15], 0 offen")
    g.e("buffer_store_dwordx4 v[12:15], v7, s[12:15], 0 offen offset:512")
    g.e("buffer_store_dwordx4 v[16:19], v7, s[12:15], s21 offen")
    g.e("buffer_store_dwordx4 v[20:23], v7, s[12:15], s21 offen offset:512")
    if STAMP:
        g.label(done + "_x")
        stamp(g, 4)
        g.e("s_waitcnt vmcnt(0)")
        stamp(g, 5)
        stamp_flush(g, 8)
    g.label(done)
    g.e("s_endpgm")
    return name, 64, (256, 256, 256)

def emit_phi(g, r, t):
    g.e(f"v_mul_f32 v{t}, 0x{f2u(LOG2E):08x}, v{r}")
    g.e(f"v_min_f32 v{t}, 0, v{t}")
    g.e(f"v_exp_f32 v{t}, v{t}")
    g.e(f"v_add_f32 v{r}, 0x{f2u(1e-6):08x}, v{r}")
    g.e(f"v_max_f32 v{r}, 0x{f2u(1e-6):08x}, v{r}")
    g.e(f"v_add_f32 v{r}, v{r}, v{t}")

def k1(g, NA=4, NS=5):
    name = "k1_qkv_kernel"
    kernel_begin(g, name)
    done = "k1_done"
    va = Alloc(4)
    vLane = 2; vT = 3
    sWv = 3
    common_entry(g, 256, vLane, sWv, done)
    g.e("s_load_dwordx2 s[4:5], s[0:1], 8")
    g.e("s_load_dwordx2 s[6:7], s[0:1], 72")
    if PF:
        g.e("s_load_dwordx2 s[48:49], s[0:1], 16")
        g.e("s_load_dwordx4 s[52:55], s[0:1], 32")
    sMt, sJ = 20, 21
    g.e("s_and_b32 s16, s2, 7")
    g.e("s_lshr_b32 s17, s2, 3")
    g.e("s_and_b32 s18, s16, 1")
    g.e("s_lshl_b32 s18, s18, 3")
    g.e("s_and_b32 s19, s17, 7")
    g.e(f"s_add_u32 s{sMt}, s18, s19")
    g.e("s_lshr_b32 s18, s16, 1")
    g.e("s_lshl_b32 s18, s18, 2")
    g.e("s_lshr_b32 s19, s17, 3")
    g.e(f"s_add_u32 s{sJ}, s18, s19")
    RB, CB, D = 1, 6, 1
    acc = [[va.get(16, 4) for cb in range(CB)]]
    araw = [va.get(4, 4) for _ in range(NA * 4 * RB)]
    bfr = [va.get(4, 4) for _ in range(D * CB)]
    vA = [va.get()]; vBl = va.get(); vBrd = va.get()
    vD = [va.get() for _ in range(6)]
    sRbg = 22
    g.e(f"s_lshl_b32 s{sRbg}, s{sMt}, 2")
    g.e(f"s_add_u32 s{sRbg}, s{sRbg}, s{sWv}")
    g.e(f"s_lshl_b32 s16, s{sRbg}, 16")
    g.e(f"v_lshlrev_b32 v{vA[0]}, 4, v{vLane}")
    g.e(f"v_add_u32 v{vA[0]}, s16, v{vA[0]}")
    emit_vBl_std(g, vBl, vLane, vT)
    emit_dma_lane_std(g, vD[0], vLane, vT, 6144, 16)
    g.e(f"s_mul_i32 s16, s{sWv}, {16*6144}")
    g.e(f"s_lshl_b32 s17, s{sJ}, 7")
    g.e("s_add_u32 s16, s16, s17")
    g.e(f"v_add_u32 v{vD[0]}, s16, v{vD[0]}")
    dma = []
    for kbs in range(2):
        for seg in range(3):
            i = kbs * 3 + seg
            if i: g.e(f"v_add_u32 v{vD[i]}, {kbs*8*6144 + seg*2048}, v{vD[0]}")
            dma.append((vD[i], (kbs * 3 + seg) * 1024, False))
    sWave = 23
    g.e(f"s_mul_i32 s{sWave}, s{sWv}, 6144")
    g.e("s_waitcnt lgkmcnt(0)")
    make_srd(g, 8, 6, 4 * MB, WS_XN)
    make_srd(g, 12, 4, 1024 * 6144)
    pfc = {}
    if PF:
        make_srd(g, 36, 48, 2 * MB)
        make_srd(g, 40, 52, 1024 * 7168)
        make_srd(g, 44, 54, 1024 * 7168)
        vP = va.get(); vJ = va.get()
        g.e("s_lshl_b32 s16, s2, 13")
        g.e(f"v_lshl_add_u32 v{vP}, v0, 5, s16")
        g.e("s_mov_b32 s33, 0")
        pfc = dict(pf=[(0, 36), (1, 40), (2, 44)], pf_junk=vJ, pf_voff=vP, pf_soff=33, pf_step=2 * MB)
    c = dict(pfc, P=CFG['k1'][0], R=CFG['k1'][1], rate=CFG['k1'][2], name='k1', RB=RB, CB=CB, D=D, NA=NA, NS=NS, KT=16, acc=acc, araw=araw, bfr=bfr, vA=vA, vBl=vBl, vBrd=vBrd,
             srdA=8, srdB=12, sregs=(24, 25, 26, 27, 28, 29, 30, 31), sAprev=32, stage=24576, tileB=64 * 6144,
             dma=dma, sWave=sWave, swap=[1, 1, 0, 0, 0, 0],
             b_imm=lambda kk, cb, q: ((2 * kk + q) * 3 + (cb >> 1)) * 1024 + (cb & 1) * 512)
    gemm_core(g, c)
    make_srd(g, 36, 6, 4 * MB, WS_PQ)
    make_srd(g, 40, 6, 2 * MB, WS_KVP)
    make_srd(g, 44, 6, 64 * 1024, WS_ZP)
    ep = Alloc(araw[0])
    t0 = ep.get(4)
    for cb in range(4):
        for i in range(16):
            emit_phi(g, acc[0][cb] + i, t0 + (i & 3))
    pk = [ep.get(8, 4) for _ in range(6)]
    for cb in range(6):
        for i in range(8):
            g.e(f"v_cvt_pk_bf16_f32 v{pk[cb]+i}, v{acc[0][cb]+2*i}, v{acc[0][cb]+2*i+1}")
    g.e(f"s_lshl_b32 s16, s{sJ}, 12")
    for cb in range(2):
        for s in range(2):
            g.e(f"buffer_store_dwordx4 {vr(pk[cb]+4*s,4)}, v{vA[0]}, s[36:39], s16 offen offset:{(2*cb+s)*1024}")
    ones = ep.get(4, 4)
    for i in range(4): g.e(f"v_mov_b32 v{ones+i}, 0x3f803f80")
    kvz = [acc[0][0], acc[0][1], acc[0][2], acc[0][3]]
    zero_regs(g, kvz[0], 64)
    g.e("s_nop 1")
    for hh in range(2):
        for s in range(2):
            g.e(f"v_mfma_f32_32x32x16_bf16 {vr(kvz[hh],16)}, {vr(pk[2+hh]+4*s,4)}, {vr(pk[4+hh]+4*s,4)}, {vr(kvz[hh],16)}")
            g.e(f"v_mfma_f32_32x32x16_bf16 {vr(kvz[2+hh],16)}, {vr(pk[2+hh]+4*s,4)}, {vr(ones,4)}, {vr(kvz[2+hh],16)}")
    g.e("s_barrier")
    g.e("s_nop 15")
    vL = ep.get(); vL2 = ep.get()
    g.e(f"v_lshlrev_b32 v{vL}, 4, v{vLane}")
    g.e(f"s_lshl_b32 s16, s{sWv}, 14")
    g.e(f"v_add_u32 v{vL2}, s16, v{vL}")
    for it in range(4):
        for q in range(4):
            g.e(f"ds_write_b128 v{vL2}, {vr(kvz[it]+4*q,4)} offset:{it*4096+q*1024}")
    g.e("s_waitcnt lgkmcnt(0)")
    g.e("s_barrier")
    g.e(f"s_lshl_b32 s16, s{sWv}, 12")
    g.e(f"v_add_u32 v{vL2}, s16, v{vL}")
    for w in range(4):
        for q in range(4):
            g.e(f"ds_read_b128 {vr(kvz[w]+4*q,4)}, v{vL2} offset:{w*16384+q*1024}")
    g.e("s_waitcnt lgkmcnt(0)")
    for i in range(16):
        g.e(f"v_add_f32 v{kvz[0]+i}, v{kvz[0]+i}, v{kvz[1]+i}")
        g.e(f"v_add_f32 v{kvz[2]+i}, v{kvz[2]+i}, v{kvz[3]+i}")
        g.e(f"v_add_f32 v{kvz[0]+i}, v{kvz[0]+i}, v{kvz[2]+i}")
    g.e(f"s_and_b32 s16, s{sWv}, 1")
    g.e(f"s_lshl_b32 s17, s{sJ}, 1")
    g.e("s_add_u32 s16, s16, s17")
    g.e(f"s_lshl_b32 s17, s{sMt}, 5")
    g.e("s_add_u32 s16, s16, s17")
    g.e(f"s_cmp_ge_u32 s{sWv}, 2")
    g.e("s_cbranch_scc1 k1_z")
    g.e("s_lshl_b32 s16, s16, 12")
    for q in range(4):
        g.e(f"buffer_store_dwordx4 {vr(kvz[0]+4*q,4)}, v{vL}, s[40:43], s16 offen offset:{q*1024}")
    g.e(f"s_branch {done}" + ("_x" if STAMP else ""))
    g.label("k1_z")
    g.e("s_lshl_b32 s16, s16, 7")
    g.e(f"v_lshrrev_b32 v{vL}, 5, v{vLane}")
    g.e(f"v_lshlrev_b32 v{vL}, 6, v{vL}")
    g.e("s_mov_b32 exec_lo, 1")
    g.e("s_mov_b32 exec_hi, 1")
    for q in range(4):
        g.e(f"buffer_store_dwordx4 {vr(kvz[0]+4*q,4)}, v{vL}, s[44:47], s16 offen offset:{q*16}")
    if STAMP:
        g.label(done + "_x")
        stamp(g, 4)
        g.e("s_waitcnt vmcnt(0)")
        stamp(g, 5)
        stamp_flush(g, 8)
    g.label(done)
    g.e("s_endpgm")
    return name, va.n, (256, 256, NS * 24576)

def k2(g):
    name = "k2_att_kernel"
    kernel_begin(g, name)
    done = "k2_done"
    vLane = 2; sWv = 3
    common_entry(g, 256, vLane, sWv, done)
    g.e("s_load_dwordx2 s[6:7], s[0:1], 72")
    sH, sC = 20, 21
    g.e(f"s_lshr_b32 s{sH}, s2, 3")
    g.e(f"s_and_b32 s{sC}, s2, 7")
    g.e(f"v_lshlrev_b32 v3, 4, v{vLane}")
    g.e(f"v_lshrrev_b32 v4, 5, v{vLane}")
    g.e("v_lshlrev_b32 v4, 6, v4")
    g.e("s_waitcnt lgkmcnt(0)")
    make_srd(g, 8, 6, 2 * MB, WS_KVP)
    make_srd(g, 12, 6, 64 * 1024, WS_ZP)
    make_srd(g, 24, 6, 4 * MB, WS_PQ)
    make_srd(g, 28, 6, 4 * MB, WS_O)
    g.e(f"s_lshl_b32 s16, s{sWv}, 7")
    g.e(f"s_add_u32 s16, s16, s{sH}")
    KV = 16; Z = 80
    for i in range(4):
        g.e(f"s_add_u32 s17, s16, {32*i}")
        g.e("s_lshl_b32 s18, s17, 12")
        g.e("s_lshl_b32 s19, s17, 7")
        for q in range(4):
            g.e(f"buffer_load_dwordx4 {vr(KV+16*i+4*q,4)}, v3, s[8:11], s18 offen offset:{q*1024}")
        for q in range(4):
            g.e(f"buffer_load_dwordx4 {vr(Z+16*i+4*q,4)}, v4, s[12:15], s19 offen offset:{q*16}")
    PQ = 144
    g.e(f"s_lshl_b32 s16, s{sC}, 3")
    g.e(f"s_lshl_b32 s17, s{sWv}, 1")
    g.e("s_add_u32 s16, s16, s17")
    g.e("s_lshl_b32 s16, s16, 16")
    g.e(f"s_lshl_b32 s17, s{sH}, 11")
    g.e("s_add_u32 s22, s16, s17")
    g.e("s_add_u32 s23, s22, 65536")
    for b in range(2):
        for s in range(2):
            g.e(f"buffer_load_dwordx4 {vr(PQ+8*b+4*s,4)}, v3, s[24:27], s{22+b} offen offset:{s*1024}")
    g.e("s_waitcnt vmcnt(4)")
    for base in (KV, Z):
        for i in range(16):
            g.e(f"v_add_f32 v{base+i}, v{base+i}, v{base+16+i}")
            g.e(f"v_add_f32 v{base+32+i}, v{base+32+i}, v{base+48+i}")
            g.e(f"v_add_f32 v{base+i}, v{base+i}, v{base+32+i}")
    g.e(f"s_lshl_b32 s16, s{sWv}, 13")
    g.e("v_add_u32 v5, s16, v3")
    for k, base in enumerate((KV, Z)):
        for q in range(4):
            g.e(f"ds_write_b128 v5, {vr(base+4*q,4)} offset:{k*4096+q*1024}")
    g.e("s_waitcnt lgkmcnt(0)")
    g.e("s_barrier")
    for k, base in enumerate((KV, Z)):
        for w in range(4):
            for q in range(4):
                g.e(f"ds_read_b128 {vr(base+16*w+4*q,4)}, v3 offset:{w*8192+k*4096+q*1024}")
        g.e("s_waitcnt lgkmcnt(0)")
        for i in range(16):
            g.e(f"v_add_f32 v{base+i}, v{base+i}, v{base+16+i}")
            g.e(f"v_add_f32 v{base+32+i}, v{base+32+i}, v{base+48+i}")
            g.e(f"v_add_f32 v{base+i}, v{base+i}, v{base+32+i}")
    KF = 160; ZF = 168
    for i in range(8):
        g.e(f"v_cvt_pk_bf16_f32 v{KF+i}, v{KV+2*i}, v{KV+2*i+1}")
        g.e(f"v_cvt_pk_bf16_f32 v{ZF+i}, v{Z+2*i}, v{Z+2*i+1}")
    NUM = [16, 32]; DEN = [48, 64]
    zero_regs(g, 16, 64)
    g.e("s_waitcnt vmcnt(0)")
    for b in range(2):
        for s in range(2):
            g.e(f"v_mfma_f32_32x32x16_bf16 {vr(NUM[b],16)}, {vr(KF+4*s,4)}, {vr(PQ+8*b+4*s,4)}, {vr(NUM[b],16)}")
            g.e(f"v_mfma_f32_32x32x16_bf16 {vr(DEN[b],16)}, {vr(ZF+4*s,4)}, {vr(PQ+8*b+4*s,4)}, {vr(DEN[b],16)}")
    g.e("s_nop 15")
    for b in range(2):
        g.e(f"v_add_f32 v{DEN[b]}, 0x{f2u(1e-6):08x}, v{DEN[b]}")
        g.e(f"v_rcp_f32 v{DEN[b]}, v{DEN[b]}")
    g.e("s_nop 0")
    OUT = 80
    for b in range(2):
        for i in range(16):
            g.e(f"v_mul_f32 v{NUM[b]+i}, v{NUM[b]+i}, v{DEN[b]}")
        for i in range(8):
            g.e(f"v_cvt_pk_bf16_f32 v{OUT+8*b+i}, v{NUM[b]+2*i}, v{NUM[b]+2*i+1}")
        for s in range(2):
            g.e(f"buffer_store_dwordx4 {vr(OUT+8*b+4*s,4)}, v3, s[28:31], s{22+b} offen offset:{s*1024}")
    if STAMP:
        g.label(done + "_x")
        stamp(g, 4)
        g.e("s_waitcnt vmcnt(0)")
        stamp(g, 5)
        stamp_flush(g, 8)
    g.label(done)
    g.e("s_endpgm")
    return name, 176, (256, 256, 32768)

def k35(g, which, NA=8, NS=8):
    is3 = which == 3
    name = "k3_wo_kernel" if is3 else "k5_down_kernel"
    KT = 16 if is3 else 56
    KS = KT * 4
    kernel_begin(g, name)
    done = f"k{which}_done"
    va = Alloc(4)
    vLane = 2; vT = 3; sWv = 3
    common_entry(g, 256, vLane, sWv, done)
    g.e(f"s_load_dwordx2 s[4:5], s[0:1], {16 if is3 else 48}")
    g.e("s_load_dwordx2 s[6:7], s[0:1], 72")
    g.e(f"s_load_dwordx2 s[34:35], s[0:1], {0 if is3 else 56}")
    sMt, sNt = 20, 21
    g.e("s_and_b32 s16, s2, 7")
    g.e("s_lshr_b32 s17, s2, 3")
    g.e("s_lshr_b32 s18, s16, 1")
    g.e("s_lshl_b32 s18, s18, 2")
    g.e("s_and_b32 s19, s17, 3")
    g.e(f"s_add_u32 s{sMt}, s18, s19")
    g.e("s_and_b32 s18, s16, 1")
    g.e("s_lshl_b32 s18, s18, 3")
    g.e("s_lshr_b32 s19, s17, 2")
    g.e(f"s_add_u32 s{sNt}, s18, s19")
    RB, CB, D = 1, 2, 4
    acc = [[va.get(16, 4) for cb in range(CB)]]
    res = va.get(16, 4)
    araw = [va.get(4, 4) for _ in range(NA * 4 * RB)]
    bfr = [va.get(4, 4) for _ in range(D * CB)]
    vA = [va.get()]; vBl = va.get(); vBrd = va.get()
    vD = [va.get() for _ in range(2)]
    vH = va.get(); vR = va.get()
    sRbg = 22
    g.e(f"s_lshl_b32 s{sRbg}, s{sMt}, 2")
    g.e(f"s_add_u32 s{sRbg}, s{sRbg}, s{sWv}")
    g.e(f"s_mul_i32 s16, s{sRbg}, {KS*1024}")
    g.e(f"v_lshlrev_b32 v{vA[0]}, 4, v{vLane}")
    g.e(f"v_add_u32 v{vA[0]}, s16, v{vA[0]}")
    g.e(f"s_lshl_b32 s16, s{sRbg}, 16")
    g.e(f"s_lshl_b32 s17, s{sNt}, 12")
    g.e("s_add_u32 s16, s16, s17")
    g.e(f"v_lshlrev_b32 v{vH}, 4, v{vLane}")
    g.e(f"v_add_u32 v{vH}, s16, v{vH}")
    g.e(f"v_and_b32 v{vR}, 31, v{vLane}")
    g.e(f"v_lshlrev_b32 v{vR}, 11, v{vR}")
    g.e(f"v_lshrrev_b32 v{vT}, 5, v{vLane}")
    g.e(f"v_lshl_add_u32 v{vR}, v{vT}, 4, v{vR}")
    g.e(f"s_lshl_b32 s16, s{sRbg}, 16")
    g.e(f"s_lshl_b32 s17, s{sNt}, 7")
    g.e("s_add_u32 s16, s16, s17")
    g.e(f"v_add_u32 v{vR}, s16, v{vR}")
    emit_vBl_std(g, vBl, vLane, vT)
    emit_dma_lane_std(g, vD[0], vLane, vT, 2048, 16)
    g.e(f"s_mul_i32 s16, s{sWv}, {16*2048}")
    g.e(f"s_lshl_b32 s17, s{sNt}, 7")
    g.e("s_add_u32 s16, s16, s17")
    g.e(f"v_add_u32 v{vD[0]}, s16, v{vD[0]}")
    g.e(f"v_add_u32 v{vD[1]}, {8*2048}, v{vD[0]}")
    dma = [(vD[0], 0, False), (vD[1], 1024, False)]
    sWave = 23
    g.e(f"s_lshl_b32 s{sWave}, s{sWv}, 11")
    g.e("s_waitcnt lgkmcnt(0)")
    if is3: make_srd(g, 8, 6, 4 * MB, WS_O)
    else: make_srd(g, 8, 6, 64 * 224 * 1024, WS_ACT)
    make_srd(g, 12, 4, KT * 64 * 2048)
    make_srd(g, 36, 6, 4 * MB, WS_H)
    make_srd(g, 40, 34, 4 * MB)
    def hook_pre(st):
        for j in range(4):
            if is3: st.vmop(f"buffer_load_dwordx4 {vr(res+4*j,4)}, v{vR}, s[40:43], 0 offen offset:{j*32}", ('X', j))
            else: st.vmop(f"buffer_load_dwordx4 {vr(res+4*j,4)}, v{vH}, s[36:39], 0 offen offset:{j*1024}", ('X', j))
    cf = CFG[f'k{which}']
    c = dict(P=cf[0], R=cf[1], rate=cf[2], hook_pre=hook_pre, name=f'k{which}', RB=RB, CB=CB, D=D, NA=NA, NS=NS, KT=KT, acc=acc, araw=araw, bfr=bfr, vA=vA, vBl=vBl, vBrd=vBrd,
             srdA=8, srdB=12, sregs=(24, 25, 26, 27, 28, 29, 30, 31), sAprev=32, stage=8192, tileB=64 * 2048,
             dma=dma, sWave=sWave, swap=[1, 1], bar_cb=0,
             b_imm=lambda kk, cb, q: (2 * kk + q) * 1024 + cb * 512)
    gemm_core(g, c)
    ep = Alloc(araw[0])
    t = ep.get(4)
    if is3:
        for j in range(4):
            g.e(f"v_permlane32_swap_b32 v{res+4*j}, v{res+4*j+2}")
            g.e(f"v_permlane32_swap_b32 v{res+4*j+1}, v{res+4*j+3}")
        g.e("s_nop 1")
    a0 = acc[0][0]
    for d in range(16):
        g.e(f"v_lshlrev_b32 v{t}, 16, v{res+d}")
        g.e(f"v_and_b32 v{t+1}, 0xffff0000, v{res+d}")
        g.e(f"v_add_f32 v{a0+2*d}, v{a0+2*d}, v{t}")
        g.e(f"v_add_f32 v{a0+2*d+1}, v{a0+2*d+1}, v{t+1}")
    out = ep.get(16, 4)
    for d in range(16):
        g.e(f"v_cvt_pk_bf16_f32 v{out+d}, v{a0+2*d}, v{a0+2*d+1}")
    if is3:
        for j in range(4):
            g.e(f"buffer_store_dwordx4 {vr(out+4*j,4)}, v{vH}, s[36:39], 0 offen offset:{j*1024}")
        S = ep.get(2, 2); S2 = ep.get(2, 2)
        g.e(f"v_mov_b32 v{S}, 0")
        g.e(f"v_mov_b32 v{S+1}, 0")
        for d in range(16):
            g.e(f"v_lshlrev_b32 v{t}, 16, v{out+d}")
            g.e(f"v_and_b32 v{t+1}, 0xffff0000, v{out+d}")
            g.e(f"v_add_f32 v{S}, v{S}, v{t}")
            g.e(f"v_fma_f32 v{S+1}, v{t}, v{t}, v{S+1}")
            g.e(f"v_add_f32 v{S}, v{S}, v{t+1}")
            g.e(f"v_fma_f32 v{S+1}, v{t+1}, v{t+1}, v{S+1}")
        g.e(f"v_mov_b32 v{S2}, v{S}")
        g.e(f"v_mov_b32 v{S2+1}, v{S+1}")
        g.e("s_nop 1")
        g.e(f"v_permlane32_swap_b32 v{S}, v{S2}")
        g.e(f"v_permlane32_swap_b32 v{S+1}, v{S2+1}")
        g.e("s_nop 1")
        g.e(f"v_add_f32 v{S}, v{S}, v{S2}")
        g.e(f"v_add_f32 v{S+1}, v{S+1}, v{S2+1}")
        make_srd(g, 44, 6, 256 * 1024, WS_ST)
        g.e(f"v_and_b32 v{t}, 31, v{vLane}")
        g.e(f"v_lshlrev_b32 v{t}, 7, v{t}")
        g.e(f"s_lshl_b32 s16, s{sRbg}, 12")
        g.e(f"s_lshl_b32 s17, s{sNt}, 3")
        g.e("s_add_u32 s16, s16, s17")
        g.e("s_mov_b32 exec_hi, 0")
        g.e(f"buffer_store_dwordx2 {vr(S,2)}, v{t}, s[44:47], s16 offen")
    else:
        g.e("s_nop 1")
        for j in range(4):
            g.e(f"v_permlane32_swap_b32 v{out+4*j}, v{out+4*j+2}")
            g.e(f"v_permlane32_swap_b32 v{out+4*j+1}, v{out+4*j+3}")
        g.e("s_nop 1")
        for j in range(4):
            g.e(f"buffer_store_dwordx4 {vr(out+4*j,4)}, v{vR}, s[40:43], 0 offen offset:{j*32}")
    if STAMP:
        g.label(done + "_x")
        stamp(g, 4)
        g.e("s_waitcnt vmcnt(0)")
        stamp(g, 5)
        stamp_flush(g, 8)
    g.label(done)
    g.e("s_endpgm")
    return name, va.n, (256, 256, NS * 8192)

def k4(g, NA=2, NS=5):
    name = "k4_ffn_kernel"
    kernel_begin(g, name)
    done = "k4_done"
    va = Alloc(4)
    vLane = 2; vT = 3; sWv = 3
    UOFF = 14464; STAGE = 28800
    common_entry(g, 256, vLane, sWv, done)
    g.e("s_load_dwordx4 s[36:39], s[0:1], 32")
    g.e("s_load_dwordx2 s[6:7], s[0:1], 72")
    if PF: g.e("s_load_dwordx2 s[48:49], s[0:1], 48")
    sMt, sNt = 20, 21
    g.e("s_and_b32 s16, s2, 7")
    g.e("s_lshr_b32 s17, s2, 3")
    g.e("s_and_b32 s18, s16, 1")
    g.e("s_lshl_b32 s18, s18, 2")
    g.e("s_and_b32 s19, s17, 3")
    g.e(f"s_add_u32 s{sMt}, s18, s19")
    g.e("s_lshr_b32 s18, s16, 1")
    g.e("s_lshl_b32 s18, s18, 3")
    g.e("s_lshr_b32 s19, s17, 2")
    g.e(f"s_add_u32 s{sNt}, s18, s19")
    RB, CB, D = 1, 7, 1
    acc = [[va.get(16, 4) for cb in range(CB)]]
    araw = [va.get(4, 4) for _ in range(NA * 4 * RB)]
    anorm = [va.get(4, 4) for _ in range(2)]
    bfr = [va.get(4, 4) for _ in range(D * CB)]
    tmp = [va.get() for _ in range(4)]
    vA = [va.get()]; vBl = va.get(); vBrd = va.get()
    vD = [va.get() for _ in range(4)]
    vRs = va.get(); vMs = va.get(); vS = va.get()
    sRbg = 22
    g.e(f"s_lshl_b32 s{sRbg}, s{sMt}, 3")
    g.e(f"s_add_u32 s{sRbg}, s{sRbg}, s{sWv}")
    g.e(f"s_lshl_b32 s16, s{sRbg}, 16")
    g.e(f"v_lshlrev_b32 v{vA[0]}, 4, v{vLane}")
    g.e(f"v_add_u32 v{vA[0]}, s16, v{vA[0]}")
    g.e(f"v_and_b32 v{vS}, 31, v{vLane}")
    g.e(f"v_lshlrev_b32 v{vS}, 7, v{vS}")
    g.e(f"s_lshl_b32 s16, s{sRbg}, 12")
    g.e(f"v_add_u32 v{vS}, s16, v{vS}")
    g.e(f"v_lshrrev_b32 v{vT}, 5, v{vLane}")
    g.e(f"v_bfe_u32 v{vBl}, v{vLane}, 2, 2")
    g.e(f"v_lshl_add_u32 v{vT}, v{vT}, 2, v{vBl}")
    g.e(f"v_mul_u32_u24 v{vBl}, 224, v{vT}")
    g.e(f"v_bfe_u32 v{vT}, v{vLane}, 4, 1")
    g.e(f"v_mul_u32_u24 v{vT}, {UOFF}, v{vT}")
    g.e(f"v_add_u32 v{vBl}, v{vBl}, v{vT}")
    g.e(f"v_and_b32 v{vT}, 3, v{vLane}")
    g.e(f"v_lshl_add_u32 v{vBl}, v{vT}, 3, v{vBl}")
    g.e(f"s_lshr_b32 s16, s{sWv}, 1")
    g.e(f"s_mul_i32 s17, s16, {16*7168}")
    g.e(f"s_mul_i32 s18, s{sNt}, 224")
    g.e("s_add_u32 s17, s17, s18")
    for i in range(4):
        g.e(f"v_add_u32 v{tmp[0]}, {64*i}, v{vLane}")
        g.e(f"v_mul_u32_u24 v{tmp[1]}, 4682, v{tmp[0]}")
        g.e(f"v_lshrrev_b32 v{tmp[1]}, 16, v{tmp[1]}")
        g.e(f"v_mul_u32_u24 v{tmp[2]}, 14, v{tmp[1]}")
        g.e(f"v_sub_u32 v{tmp[2]}, v{tmp[0]}, v{tmp[2]}")
        g.e(f"v_mul_u32_u24 v{tmp[1]}, 7168, v{tmp[1]}")
        g.e(f"v_lshl_add_u32 v{tmp[1]}, v{tmp[2]}, 4, v{tmp[1]}")
        g.e(f"v_add_u32 v{vD[i]}, s17, v{tmp[1]}")
    dma = [(vD[i], i * 1024, i == 3) for i in range(4)]
    sWave = 23
    g.e(f"s_mul_i32 s{sWave}, s16, 3584")
    g.e(f"s_and_b32 s18, s{sWv}, 1")
    g.e(f"s_mul_i32 s19, s18, {UOFF}")
    g.e(f"s_add_u32 s{sWave}, s{sWave}, s19")
    g.e("s_waitcnt lgkmcnt(0)")
    g.e("s_cmp_eq_u32 s18, 0")
    g.e("s_cselect_b32 s4, s36, s38")
    g.e("s_cselect_b32 s5, s37, s39")
    make_srd(g, 8, 6, 4 * MB, WS_H)
    make_srd(g, 12, 4, 1024 * 7168)
    make_srd(g, 40, 6, 256 * 1024, WS_ST)
    make_srd(g, 44, 6, 64 * 224 * 1024, WS_ACT)
    pfc = {}
    if PF:
        make_srd(g, 52, 48, 3584 * 2048)
        vP = va.get(); vJ = va.get()
        g.e("s_lshl_b32 s16, s2, 12")
        g.e(f"v_lshl_add_u32 v{vP}, v0, 3, s16")
        g.e("s_mov_b32 s33, 0")
        pfc = dict(pf=[(0, 52)], pf_junk=vJ, pf_voff=vP, pf_soff=33, pf_step=1 * MB)
    st0 = acc[0][0]
    for j in range(8):
        g.e(f"buffer_load_dwordx4 {vr(st0+4*j,4)}, v{vS}, s[40:43], 0 offen offset:{j*16}")
    def hook(st):
        st.i(f"s_waitcnt vmcnt({min(63, len(st.vm))})")
        for j in (16, 8, 4, 2):
            for i in range(j):
                st.i(f"v_add_f32 v{st0+i}, v{st0+i}, v{st0+j+i}")
        st.i(f"v_mul_f32 v{st0}, 0x{f2u(1/1024):08x}, v{st0}")
        st.i(f"v_mul_f32 v{st0+1}, 0x{f2u(1/1024):08x}, v{st0+1}")
        st.i(f"v_fma_f32 v{st0+1}, -v{st0}, v{st0}, v{st0+1}")
        st.i(f"v_max_f32 v{st0+1}, 0, v{st0+1}")
        st.i(f"v_add_f32 v{st0+1}, 0x{f2u(1e-5):08x}, v{st0+1}")
        st.i(f"v_rsq_f32 v{vRs}, v{st0+1}")
        st.i("s_nop 0")
        st.i(f"v_mul_f32 v{vMs}, v{st0}, v{vRs}")
        st.i(f"v_sub_f32 v{vMs}, 0, v{vMs}")
    c = dict(pfc, P=CFG['k4'][0], R=CFG['k4'][1], rate=CFG['k4'][2], name='k4', RB=RB, CB=CB, D=D, NA=NA, NS=NS, KT=16, acc=acc, araw=araw, bfr=bfr, vA=vA, vBl=vBl, vBrd=vBrd,
             anorm=anorm, norm=True, nrm=[(vRs, vMs)], tmp=tmp, hook_pre=hook,
             srdA=8, srdB=12, sregs=(24, 25, 26, 27, 28, 29, 30, 31), sAprev=32, stage=STAGE, tileB=64 * 7168,
             dma=dma, sWave=sWave, swap=[1] * 7,
             b_imm=lambda kk, cb, q: (16 * kk + 8 * q) * 224 + cb * 32)
    gemm_core(g, c)
    C1 = -2.0 * 0.7978845608028654 * LOG2E
    C2 = C1 * 0.044715
    g.e(f"s_mov_b32 s16, 0x{f2u(C1):08x}")
    g.e(f"s_mov_b32 s17, 0x{f2u(C2):08x}")
    g.e(f"v_mov_b32 v{vT}, s16")
    ep = Alloc(araw[0])
    T = ep.get(8); O = [ep.get(4, 4) for _ in range(2)]
    vO = ep.get()
    g.e(f"s_mul_i32 s18, s{sRbg}, 224")
    g.e(f"s_mul_i32 s19, s{sNt}, 7")
    g.e("s_add_u32 s18, s18, s19")
    g.e("s_lshl_b32 s18, s18, 10")
    g.e(f"v_lshlrev_b32 v{vO}, 4, v{vLane}")
    g.e(f"v_add_u32 v{vO}, s18, v{vO}")
    g.e("s_mov_b32 s19, 4096")
    for cb in range(CB):
        a = acc[0][cb]
        for i in range(8): g.e(f"v_mul_f32 v{T+i}, v{a+i}, v{a+i}")
        for i in range(8): g.e(f"v_fma_f32 v{T+i}, v{T+i}, s17, v{vT}")
        for i in range(8): g.e(f"v_mul_f32 v{T+i}, v{T+i}, v{a+i}")
        for i in range(8): g.e(f"v_exp_f32 v{T+i}, v{T+i}")
        for i in range(8): g.e(f"v_mul_f32 v{a+i}, v{a+i}, v{a+8+i}")
        for i in range(8): g.e(f"v_add_f32 v{T+i}, 1.0, v{T+i}")
        for i in range(8): g.e(f"v_rcp_f32 v{T+i}, v{T+i}")
        g.e("s_nop 0")
        for i in range(8): g.e(f"v_mul_f32 v{a+i}, v{a+i}, v{T+i}")
        o = O[cb & 1]
        for i in range(4): g.e(f"v_cvt_pk_bf16_f32 v{o+i}, v{a+2*i}, v{a+2*i+1}")
        if cb < 4: g.e(f"buffer_store_dwordx4 {vr(o,4)}, v{vO}, s[44:47], 0 offen offset:{cb*1024}")
        else: g.e(f"buffer_store_dwordx4 {vr(o,4)}, v{vO}, s[44:47], s19 offen offset:{(cb-4)*1024}")
    if STAMP:
        g.label(done + "_x")
        stamp(g, 4)
        g.e("s_waitcnt vmcnt(0)")
        stamp(g, 5)
        stamp_flush(g, 8)
    g.label(done)
    g.e("s_endpgm")
    return name, va.n, (256, 512, NS * STAGE)

def main(out):
    g = G()
    ks = []
    ks.append(k0(g))
    ks.append(k1(g))
    ks.append(k2(g))
    ks.append(k35(g, 3))
    ks.append(k4(g))
    ks.append(k35(g, 5))
    head = []
    for name, nv, (grid, blk, lds) in ks:
        head.append(f"; @launch kernel={name} grid=({grid},1,1) block=({blk},1,1) lds={lds}")
    head.append('.amdgcn_target "amdgcn-amd-amdhsa--gfx950"')
    head.append(".text")
    txt = "\n".join(head) + "\n" + g.text()
    txt += '.section .rodata,"a"\n'
    for name, nv, _ in ks:
        txt += ".p2align 6\n" + kernel_desc(name, nv)
    open(out, "w").write(txt)
    for name, nv, l in ks: print(name, "vgpr", nv, l)

if __name__ == "__main__":
    main(sys.argv[1] if len(sys.argv) > 1 else f"cdna_kernels/{NAME}.s")
```

```python
import sys, struct

NAME = "sequential_preLN__linear_attn_block__geglu_ffn__prompt"
MB = 1 << 20
WS_XN = 0 * MB
WS_PQ = 8 * MB
WS_KVP = 12 * MB
WS_ZP = 14 * MB
WS_O = 16 * MB
WS_H = 20 * MB
WS_ST = 26 * MB
WS_S = 27 * MB
WS_ACT = 32 * MB
WS_BYTES = 48 * MB
OOB = 0x7f000000
import os
HSTR = int(os.environ.get('GHSTR', '65536'))

def f2u(x):
    return struct.unpack("<I", struct.pack("<f", x))[0]

class G:
    def __init__(self):
        self.lines = []
        self.uid = 0
    def e(self, s):
        self.lines.append("    " + s)
    def label(self, s):
        self.lines.append(s + ":")
    def raw(self, s):
        self.lines.append(s)
    def newlabel(self, p="L"):
        self.uid += 1
        return f"{p}_{self.uid}"
    def text(self):
        return "\n".join(self.lines) + "\n"

def vr(b, n=1):
    return f"v{b}" if n == 1 else f"v[{b}:{b+n-1}]"
def sr(b, n=1):
    return f"s{b}" if n == 1 else f"s[{b}:{b+n-1}]"

class Alloc:
    def __init__(self, start=0, limit=256):
        self.n = start; self.limit = limit
    def get(self, cnt=1, align=1):
        self.n = (self.n + align - 1) // align * align
        b = self.n; self.n += cnt
        assert self.n <= self.limit, f"out of regs {self.n}"
        return b

def kernel_begin(g, name):
    g.raw(f".globl {name}")
    g.raw(".p2align 8")
    g.raw(f".type {name},@function")
    g.label(name)

def kernel_desc(name, nv, ns=96):
    nv = max(nv, 8)
    acc = (nv + 3) // 4 * 4
    return f""".amdhsa_kernel {name}
  .amdhsa_next_free_vgpr {nv}
  .amdhsa_next_free_sgpr {ns}
  .amdhsa_accum_offset {acc}
  .amdhsa_group_segment_fixed_size 0
  .amdhsa_kernarg_size 80
  .amdhsa_user_sgpr_count 2
  .amdhsa_user_sgpr_kernarg_segment_ptr 1
  .amdhsa_system_sgpr_workgroup_id_x 1
.end_amdhsa_kernel
"""

import os
NOPF = os.environ.get("GNOPF", "")
PF = "0" not in NOPF; PF1 = "1" not in NOPF; PF4 = "4" not in NOPF
PFS = int(os.environ.get("GPFS", "6"))
CFG = dict(k1=(2, 16, 2), k3=(2, 16, 2), k4=(2, 16, 2), k5=(2, 56, 2))
for kv in os.environ.get("GCFG", "").split(";"):
    if kv:
        k_, v_ = kv.split("="); CFG[k_] = tuple(int(x) for x in v_.split(","))
STAMP = os.environ.get("GSTAMP", "") != ""
def stamp(g, i):
    if not STAMP: return
    g.e(f"s_memtime s[{60+2*i}:{61+2*i}]")
    g.e("s_waitcnt lgkmcnt(0)")
def stamp_flush(g, n):
    if not STAMP: return
    L = g.newlabel("Lst")
    g.e("s_cmp_lg_u32 s2, 5")
    g.e(f"s_cbranch_scc1 {L}")
    g.e("s_mov_b64 exec, -1")
    g.e("s_load_dwordx2 s[80:81], s[0:1], 64")
    g.e("s_waitcnt lgkmcnt(0)")
    g.e("s_mov_b32 s82, 256")
    g.e("s_mov_b32 s83, 0x00020000")
    g.e("s_lshl_b32 s84, s3, 5")
    g.e("v_mov_b32 v0, s84")
    for i in range(n):
        g.e(f"s_sub_u32 s85, s{60+2*i}, s60")
        g.e("v_mov_b32 v1, s85")
        g.e(f"buffer_store_dword v1, v0, s[80:83], 0 offen offset:{4*i}")
    g.label(L)

def make_srd(g, d, base, nbytes, add=0):
    if add:
        g.e(f"s_add_u32 s{d}, s{base}, {add}")
        g.e(f"s_addc_u32 s{d+1}, s{base+1}, 0")
    else:
        g.e(f"s_mov_b32 s{d}, s{base}")
        g.e(f"s_mov_b32 s{d+1}, s{base+1}")
    g.e(f"s_mov_b32 s{d+2}, {nbytes}")
    g.e(f"s_mov_b32 s{d+3}, 0x00020000")

import os
DBG = set(os.environ.get("GDBG", "").split(","))
class Stream:
    def __init__(self):
        self.items = []
        self.vm = []; self.lg = []
        self.vm_done = 0; self.lg_done = 0
    def i(self, text):
        self.items.append(('i', text))
    def vmop(self, text, oid):
        self.items.append(('i', text)); self.vm.append(oid)
    def lgop(self, text, oid):
        self.items.append(('i', text)); self.lg.append(oid)
    def need(self, kind, oids):
        lst = self.vm if kind == 'vm' else self.lg
        done = self.vm_done if kind == 'vm' else self.lg_done
        idx = max(lst.index(o) for o in oids)
        if idx < done:
            self.items.append(['w', kind, None]); return
        n = len(lst) - 1 - idx
        cap = 63 if kind == 'vm' else 15
        n = min(n, cap)
        self.items.append(['w', kind, n])
        if kind == 'vm': self.vm_done = len(lst) - n
        else: self.lg_done = len(lst) - n

def gemm_core(g, c):
    RB, CB, D, NA, NS, KT = c['RB'], c['CB'], c['D'], c['NA'], c['NS'], c['KT']
    norm = c.get('norm', False)
    acc = c['acc']; araw = c['araw']; bfr = c['bfr']; anorm = c.get('anorm')
    vA = c['vA']; vBl = c['vBl']; vBrd = c['vBrd']
    srdA = c['srdA']; srdB = c['srdB']
    sA, sAe, sB, sBe, sW, sWw, sR, sCnt = c['sregs']
    stage = c['stage']; tileB = c['tileB']
    dma = c['dma']
    sWave = c['sWave']
    swap = c['swap']; b_imm = c['b_imm']
    bar_cb = c.get('bar_cb', min(1, CB - 1))
    tmp = c.get('tmp')
    U = NA
    PB = NS - 1
    P = c.get('P', 2)
    R = c.get('R', U)
    rate = c.get('rate', 2)
    assert R == KT or ((KT - R) % U == 0 and R % U == 0 and R >= 1)
    cur = {'A': None, 'B': None}
    bq = []

    def a_reg(t, kk, rb): return araw[((t % NA) * 4 + kk) * RB + rb]
    def b_reg(s, cb): return bfr[(s % D) * CB + cb]
    def n_reg(s, rb): return anorm[(s & 1) * RB + rb]

    def a_const(st, tt, kk, rb):
        if tt >= KT: return
        if cur['A'] != tt:
            st.i(f"s_mov_b32 s{sAe}, {tt*4096}"); cur['A'] = tt
        st.vmop(f"buffer_load_dwordx4 {vr(a_reg(tt,kk,rb),4)}, v{vA[rb]}, {sr(srdA,4)}, s{sAe} offen offset:{kk*1024}", ('A', tt, kk, rb))
    def d_const(st, tt, i):
        if tt >= KT: return
        vo, lc, half = dma[i]
        if cur['B'] != tt:
            st.i(f"s_mov_b32 s{sBe}, {tt*tileB}"); cur['B'] = tt
        st.i(f"s_add_u32 m0, s{sWave}, {(tt % NS) * stage + lc}")
        if half: st.i("s_mov_b32 exec_hi, 0")
        else: st.i("s_nop 0")
        st.vmop(f"buffer_load_dwordx4 v{vo}, {sr(srdB,4)}, s{sBe} offen lds", ('D', tt, i))
        if half: st.i("s_mov_b32 exec_hi, -1")
    def issue_reads(st, ts, cb):
        if ts >= 4 * KT and R == KT: return
        tt, tk = divmod(ts, 4)
        for q in range(2):
            st.lgop(f"ds_read_b64_tr_b16 {vr(b_reg(ts,cb)+2*q,2)}, v{vBrd} offset:{b_imm(tk,cb,q)}", ('R', ts, cb, q))
    def norm_fill(st, s1):
        out = []
        if s1 >= 4 * KT and R == KT: return out
        nt_, nk_ = divmod(s1, 4)
        for rb in range(RB):
            src = a_reg(nt_, nk_, rb); dst = n_reg(s1, rb)
            rs, ms = c['nrm'][rb]
            for d in range(4):
                t0, t1 = tmp[(d & 1) * 2], tmp[(d & 1) * 2 + 1]
                def f(src=src, dst=dst, d=d, t0=t0, t1=t1, rs=rs, ms=ms, nt_=nt_, nk_=nk_, rb=rb):
                    if d == 0: st.need('vm', [('A', nt_, nk_, rb)])
                    st.i(f"v_lshlrev_b32 v{t0}, 16, v{src+d}")
                    st.i(f"v_and_b32 v{t1}, 0xffff0000, v{src+d}")
                    st.i(f"v_fma_f32 v{t0}, v{t0}, v{rs}, v{ms}")
                    st.i(f"v_fma_f32 v{t1}, v{t1}, v{rs}, v{ms}")
                    st.i(f"v_cvt_pk_bf16_f32 v{dst+d}, v{t0}, v{t1}")
                out.append(f)
        return out

    def gen_tile(st, t):
        peeled = t < R
        if not peeled:
            st.i(f"s_cmp_lt_u32 s{sA}, {KT*4096}")
            st.i(f"s_cselect_b32 s{sAe}, s{sA}, {OOB}")
            st.i(f"s_add_u32 s{sA}, s{sA}, 4096")
        barstep = 4 - D
        if peeled:
            for fn in c.get('at_tile', {}).get(t, []): fn(st, bq)
        for kk in range(4):
            s = 4 * t + kk
            fill = []
            ps = s if norm else s - 1
            pt, pk = divmod(ps, 4)
            if ps >= 0:
                for rb in range(RB):
                    tgt = pt + NA
                    if peeled:
                        bq.append(lambda tgt=tgt, pk=pk, rb=rb: a_const(st, tgt, pk, rb))
                    else:
                        so = f"s{sAe}" if pt == t else f"s{c['sAprev']}"
                        def f(rb=rb, pt=pt, pk=pk, tgt=tgt, so=so):
                            st.vmop(f"buffer_load_dwordx4 {vr(a_reg(pt,pk,rb),4)}, v{vA[rb]}, {sr(srdA,4)}, {so} offen offset:{pk*1024}", ('A', tgt, pk, rb))
                        fill.append(f)
            nfill = norm_fill(st, s + 1) if norm else []
            deferred = []
            bar_done = kk > barstep
            queue = fill + nfill
            per = -(-len(queue) // CB) if queue else 0
            for cb in range(CB):
                st.need('lg', [('R', s, cb, 0), ('R', s, cb, 1)])
                if cb == 0 and not norm:
                    st.need('vm', [('A', t, kk, rb) for rb in range(RB)])
                for rb in range(RB):
                    a = n_reg(s, rb) if norm else a_reg(t, kk, rb)
                    b = b_reg(s, cb)
                    x, y = (b, a) if swap[cb] else (a, b)
                    st.i(f"v_mfma_f32_32x32x16_bf16 {vr(acc[rb][cb],16)}, {vr(x,4)}, {vr(y,4)}, {vr(acc[rb][cb],16) if s else 0}")
                if kk == barstep and cb == bar_cb:
                    last = (R == KT and t == KT - 1)
                    if not last:
                        st.need('vm', [('D', t + 1, i) for i in range(len(dma))])
                        st.i("s_barrier")
                    if peeled:
                        if not last: st.i(f"v_add_u32 v{vBrd}, {((t + 1) % NS) * stage}, v{vBl}")
                    else:
                        st.i(f"s_add_u32 s{sR}, s{sR}, {stage}")
                        st.i(f"s_cmp_lt_u32 s{sR}, {NS*stage}")
                        st.i(f"s_cselect_b32 s{sR}, s{sR}, 0")
                        st.i(f"v_add_u32 v{vBrd}, s{sR}, v{vBl}")
                    bar_done = True
                    if t < R - 1 or R == KT:
                        for i in range(len(dma)):
                            bq.append(lambda tt=t + PB, i=i: d_const(st, tt, i))
                    else:
                        if t == R - 1:
                            while bq: bq.pop(0)()
                            st.i(f"s_mov_b32 s{sB}, {(t + PB) * tileB}")
                            st.i(f"s_mov_b32 s{sW}, {((t + PB) % NS) * stage}")
                            st.i(f"s_mov_b32 s{sR}, {((t + 1) % NS) * stage}")
                        st.i(f"s_cmp_lt_u32 s{sB}, {KT*tileB}")
                        st.i(f"s_cselect_b32 s{sBe}, s{sB}, {OOB}")
                        st.i(f"s_add_u32 s{sB}, s{sB}, {tileB}")
                        st.i(f"s_add_u32 s{sWw}, s{sW}, s{sWave}")
                        st.i(f"s_add_u32 s{sW}, s{sW}, {stage}")
                        st.i(f"s_cmp_lt_u32 s{sW}, {NS*stage}")
                        st.i(f"s_cselect_b32 s{sW}, s{sW}, 0")
                        c['_dmaq'] = [(t + PB, i) for i in range(len(dma))]
                    for dcb in deferred: issue_reads(st, s + D, dcb)
                    deferred = []
                crosses = (kk + D) >= 4
                if crosses and not bar_done:
                    deferred.append(cb)
                else:
                    issue_reads(st, s + D, cb)
                for _ in range(per):
                    if queue: queue.pop(0)()
                for _ in range(rate):
                    if bq: bq.pop(0)()
                if peeled and c.get('slot_hook'): c['slot_hook'](st, t, kk, cb)
                if kk == 2 and cb == CB - 1:
                    for (pt_, psrd) in c.get('pf', []):
                        if pt_ == t % U:
                            st.vmop(f"buffer_load_dword v{c['pf_junk']}, v{c['pf_voff']}, {sr(psrd,4)}, s{c['pf_soff']} offen", ('P', t, psrd))
                    if c.get('pf') and t % U == U - 1:
                        st.i(f"s_add_u32 s{c['pf_soff']}, s{c['pf_soff']}, {c['pf_step']}")
                if c.get('_dmaq'):
                    tt, i = c['_dmaq'].pop(0)
                    vo, lc, half = dma[i]
                    st.i(f"s_add_u32 m0, s{sWw}, {lc}")
                    if half: st.i("s_mov_b32 exec_hi, 0")
                    else: st.i("s_nop 0")
                    st.vmop(f"buffer_load_dwordx4 v{vo}, {sr(srdB,4)}, s{sBe} offen lds", ('D', tt, i))
                    if half: st.i("s_mov_b32 exec_hi, -1")
            while queue: queue.pop(0)()
            if kk == 3 and not peeled:
                st.i(f"s_mov_b32 s{c['sAprev']}, s{sAe}")
        if t == R - 1 and R < KT:
            while bq: bq.pop(0)()
            st.i(f"s_mov_b32 s{sA}, {(R + NA) * 4096}")
            st.i(f"s_mov_b32 s{c['sAprev']}, {(R - 1 + NA) * 4096 if R - 1 + NA < KT else OOB}")
            st.i(f"s_mov_b32 s{sCnt}, {(KT - R) // U}")

    st = Stream()
    c['_dmaq'] = []
    for tt in range(P):
        for i in range(len(dma)): d_const(st, tt, i)
        for kk in range(4):
            for rb in range(RB): a_const(st, tt, kk, rb)
        if tt == 0 and c.get('hook_early'): c['hook_early'](st)
    for tt in range(P, max(PB, NA)):
        if tt < PB:
            for i in range(len(dma)): bq.append(lambda tt=tt, i=i: d_const(st, tt, i))
        if tt < NA:
            for kk in range(4):
                for rb in range(RB): bq.append(lambda tt=tt, kk=kk, rb=rb: a_const(st, tt, kk, rb))
    if c.get('hook_pre'): c['hook_pre'](st)
    if norm:
        for f in norm_fill(st, 0): f()
    if STAMP: st.i("s_memtime s[72:73]"); st.i("s_waitcnt lgkmcnt(0)")
    st.need('vm', [('D', 0, i) for i in range(len(dma))])
    st.i("s_barrier")
    if STAMP: st.i("s_memtime s[74:75]"); st.i("s_waitcnt lgkmcnt(0)")
    st.i(f"v_mov_b32 v{vBrd}, v{vBl}")
    for s in range(D):
        for cb in range(CB): issue_reads(st, s, cb)
    if c.get('slot_hook'):
        for cb in range(CB): c['slot_hook'](st, -1, 3, cb)
    n_pro = len(st.items)
    for t in range(R): gen_tile(st, t)
    n_peel = len(st.items)
    dbg = DBG if c.get('name') in DBG else set()
    def out(items, loop=False):
        for it in items:
            if it[0] == 'i':
                t_ = it[1]
                if loop:
                    if 'nodma' in dbg and t_.endswith('lds'): continue
                    if 'noaload' in dbg and t_.startswith('buffer_load') and not t_.endswith('lds'): continue
                    if 'nobar' in dbg and t_ == 's_barrier': continue
                    if 'nomfma' in dbg and t_.startswith('v_mfma'): continue
                    if 'nonorm' in dbg and (t_.startswith('v_lshlrev_b32') or t_.startswith('v_and_b32') or t_.startswith('v_fma') or t_.startswith('v_cvt_pk')): continue
                    if 'noread' in dbg and t_.startswith('ds_read'): continue
                g.e(it[1])
            elif it[2] is not None:
                g.e(f"s_waitcnt {'vmcnt' if it[1]=='vm' else 'lgkmcnt'}({it[2]})")
    if R < KT:
        for t in range(R, R + U): gen_tile(st, t)
        n_b1 = len(st.items)
        for t in range(R + U, R + 2 * U): gen_tile(st, t)
        n_b2 = len(st.items)
        b1 = st.items[n_peel:n_b1]; b2 = st.items[n_b1:n_b2]
        assert len(b1) == len(b2), (len(b1), len(b2))
        for x, y in zip(b1, b2):
            assert x[0] == y[0]
            if x[0] == 'w':
                vals = [v for v in (x[2], y[2]) if v is not None]
                x[2] = min(vals) if vals else None
            else:
                assert x[1] == y[1], (x[1], y[1])
    c['nbar'] = sum(1 for it in st.items[:n_peel] if it[0] == 'i' and it[1] == 's_barrier')
    out(st.items[:n_pro])
    stamp(g, 1)
    out(st.items[n_pro:n_peel], True)
    if R < KT:
        L = g.newlabel("Lloop")
        g.label(L)
        out(b1, True)
        g.e(f"s_sub_u32 s{sCnt}, s{sCnt}, 1")
        g.e(f"s_cmp_lg_u32 s{sCnt}, 0")
        g.e(f"s_cbranch_scc1 {L}")
    stamp(g, 2)
    g.e("s_waitcnt lgkmcnt(0)" if c.get('no_final_vm') else "s_waitcnt vmcnt(0) lgkmcnt(0)")
    g.e("s_nop 15")
    stamp(g, 3)

LOG2E = 1.4426950408889634

def common_entry(g, nwg, vLane, sWv, done):
    g.e(f"s_cmp_ge_u32 s2, {nwg}")
    g.e(f"s_cbranch_scc1 {done}")
    g.e(f"v_and_b32 v{vLane}, 63, v0")
    g.e(f"v_lshrrev_b32 v1, 6, v0")
    g.e("s_nop 0")
    g.e(f"v_readfirstlane_b32 s{sWv}, v1")
    stamp(g, 0)

def emit_vBl_std(g, vBl, vLane, t):
    g.e(f"v_lshrrev_b32 v{vBl}, 5, v{vLane}")
    g.e(f"v_lshlrev_b32 v{vBl}, 8, v{vBl}")
    g.e(f"v_bfe_u32 v{t}, v{vLane}, 2, 2")
    g.e(f"v_lshl_add_u32 v{vBl}, v{t}, 6, v{vBl}")
    g.e(f"v_bfe_u32 v{t}, v{vLane}, 4, 1")
    g.e(f"v_lshl_add_u32 v{vBl}, v{t}, 5, v{vBl}")
    g.e(f"v_and_b32 v{t}, 3, v{vLane}")
    g.e(f"v_lshl_add_u32 v{vBl}, v{t}, 3, v{vBl}")

def emit_dma_lane_std(g, vD, vLane, t, ldb, sT):
    g.e(f"v_bfe_u32 v{t}, v{vLane}, 2, 3")
    g.e(f"s_mov_b32 s{sT}, {ldb}")
    g.e(f"v_mul_lo_u32 v{vD}, v{t}, s{sT}")
    g.e(f"v_lshrrev_b32 v{t}, 5, v{vLane}")
    g.e(f"v_lshl_add_u32 v{vD}, v{t}, 6, v{vD}")
    g.e(f"v_and_b32 v{t}, 3, v{vLane}")
    g.e(f"v_lshl_add_u32 v{vD}, v{t}, 4, v{vD}")

def zero_regs(g, base, n):
    for i in range(n): g.e(f"v_mov_b32 v{base+i}, 0")

def k0(g):
    name = "k0_ln_kernel"
    kernel_begin(g, name)
    done = "k0_done"
    sWv = 3
    X0 = int(os.environ.get("GX0", "0"))
    common_entry(g, 256 + X0, 2, sWv, done)
    if X0:
        g.e("s_cmp_ge_u32 s2, 256")
        g.e("s_cbranch_scc1 k0_pf")
    g.e("s_load_dwordx4 s[4:7], s[0:1], 0")
    g.e("s_load_dwordx2 s[28:29], s[0:1], 72")
    g.e("v_and_b32 v3, 7, v2")
    g.e("v_lshrrev_b32 v4, 3, v2")
    g.e("s_lshl_b32 s16, s2, 3")
    g.e("v_add_u32 v5, s16, v3")
    g.e("v_lshlrev_b32 v5, 11, v5")
    g.e("s_lshl_b32 s17, s3, 4")
    g.e("v_add_u32 v6, s17, v4")
    g.e("v_lshl_add_u32 v5, v6, 5, v5")
    g.e("s_waitcnt lgkmcnt(0)")
    make_srd(g, 8, 4, 4 * MB)
    make_srd(g, 12, 28, 4 * MB, WS_XN)
    g.e("buffer_load_dwordx4 v[8:11], v5, s[8:11], 0 offen")
    g.e("buffer_load_dwordx4 v[12:15], v5, s[8:11], 0 offen offset:16")
    g.e("buffer_load_dwordx4 v[16:19], v5, s[8:11], 0 offen offset:256")
    g.e("buffer_load_dwordx4 v[20:23], v5, s[8:11], 0 offen offset:272")
    if PF:
        make_srd(g, 24, 6, 1024 * 6144)
        g.e(f"s_lshl_b32 s22, s2, {PFS+8}")
        g.e(f"v_lshl_add_u32 v28, v0, {PFS}, s22")
        g.e(f"s_mov_b32 s23, {4*MB}")
        g.e("buffer_load_dword v29, v28, s[24:27], 0 offen")
        g.e(f"buffer_load_dword v30, v28, s[24:27], s23 offen" if PFS == 6 else "s_nop 0")
    g.e("s_lshr_b32 s18, s2, 2")
    g.e("s_lshl_b32 s18, s18, 16")
    g.e("s_and_b32 s19, s2, 3")
    g.e("s_lshl_b32 s19, s19, 7")
    g.e("s_add_u32 s18, s18, s19")
    g.e("v_lshlrev_b32 v7, 10, v6")
    g.e("v_lshl_add_u32 v7, v3, 4, v7")
    g.e("v_add_u32 v7, s18, v7")
    g.e("v_mov_b32 v24, 0")
    g.e("v_mov_b32 v25, 0")
    g.e(f"s_waitcnt vmcnt({(2 if PFS == 6 else 1) if PF else 0})")
    for d in range(16):
        g.e(f"v_lshlrev_b32 v{32+2*d}, 16, v{8+d}")
        g.e(f"v_and_b32 v{33+2*d}, 0xffff0000, v{8+d}")
    for i in range(32):
        g.e(f"v_add_f32 v24, v24, v{32+i}")
        g.e(f"v_fma_f32 v25, v{32+i}, v{32+i}, v25")
    g.e("s_nop 1")
    g.e("v_add_f32_dpp v24, v24, v24 row_ror:8 row_mask:0xf bank_mask:0xf")
    g.e("v_add_f32_dpp v25, v25, v25 row_ror:8 row_mask:0xf bank_mask:0xf")
    for op in ("v_permlane16_swap_b32", "v_permlane32_swap_b32"):
        g.e("v_mov_b32 v26, v24")
        g.e("v_mov_b32 v27, v25")
        g.e("s_nop 1")
        g.e(f"{op} v24, v26")
        g.e(f"{op} v25, v27")
        g.e("s_nop 1")
        g.e("v_add_f32 v24, v24, v26")
        g.e("v_add_f32 v25, v25, v27")
    g.e("s_lshl_b32 s20, s3, 6")
    g.e("v_lshlrev_b32 v26, 3, v3")
    g.e("v_add_u32 v27, s20, v26")
    g.e("ds_write_b64 v27, v[24:25]")
    g.e("s_waitcnt lgkmcnt(0)")
    g.e("s_barrier")
    g.e("ds_read_b64 v[8:9], v26")
    g.e("ds_read_b64 v[10:11], v26 offset:64")
    g.e("ds_read_b64 v[12:13], v26 offset:128")
    g.e("ds_read_b64 v[14:15], v26 offset:192")
    g.e("s_waitcnt lgkmcnt(0)")
    g.e("v_add_f32 v8, v8, v10")
    g.e("v_add_f32 v9, v9, v11")
    g.e("v_add_f32 v12, v12, v14")
    g.e("v_add_f32 v13, v13, v15")
    g.e("v_add_f32 v8, v8, v12")
    g.e("v_add_f32 v9, v9, v13")
    g.e(f"v_mul_f32 v8, 0x{f2u(1/1024):08x}, v8")
    g.e(f"v_mul_f32 v9, 0x{f2u(1/1024):08x}, v9")
    g.e("v_fma_f32 v9, -v8, v8, v9")
    g.e("v_max_f32 v9, 0, v9")
    g.e(f"v_add_f32 v9, 0x{f2u(1e-5):08x}, v9")
    g.e("v_rsq_f32 v9, v9")
    g.e("s_nop 0")
    g.e("v_mul_f32 v8, v8, v9")
    for i in range(32):
        g.e(f"v_fma_f32 v{32+i}, v{32+i}, v9, -v8")
    for grp in range(2):
        b = 32 + 16 * grp; o = 8 + 8 * grp
        for k, e in enumerate((0, 2, 8, 10, 4, 6, 12, 14)):
            g.e(f"v_cvt_pk_bf16_f32 v{o+k}, v{b+e}, v{b+e+1}")
    g.e("s_mov_b32 s21, 8192")
    g.e("buffer_store_dwordx4 v[8:11], v7, s[12:15], 0 offen")
    g.e("buffer_store_dwordx4 v[12:15], v7, s[12:15], 0 offen offset:512")
    g.e("buffer_store_dwordx4 v[16:19], v7, s[12:15], s21 offen")
    g.e("buffer_store_dwordx4 v[20:23], v7, s[12:15], s21 offen offset:512")
    g.e("s_waitcnt vmcnt(0)")
    if STAMP:
        g.label(done + "_x")
        stamp(g, 4)
        g.e("s_waitcnt vmcnt(0)")
        stamp(g, 5)
        stamp_flush(g, 8)
    g.label(done)
    g.e("s_endpgm")
    if X0:
        g.label("k0_pf")
        g.e("s_load_dwordx4 s[8:11], s[0:1], 32")
        g.e("s_sub_u32 s16, s2, 256")
        per = 7168 * 1024 // X0
        g.e(f"s_mul_i32 s16, s16, {per}")
        g.e("v_lshl_add_u32 v4, v0, 6, s16")
        g.e("s_waitcnt lgkmcnt(0)")
        make_srd(g, 12, 8, 1024 * 7168)
        make_srd(g, 20, 10, 1024 * 7168)
        for i in range(-(-per // 16384)):
            g.e(f"s_mov_b32 s17, {i*16384}")
            g.e("buffer_load_dword v5, v4, s[12:15], s17 offen")
            g.e("buffer_load_dword v6, v4, s[20:23], s17 offen")
        g.e("s_waitcnt vmcnt(0)")
        g.e("s_endpgm")
    return name, 64, (256 + X0, 256, 256)

def emit_phi(g, r, t):
    g.e(f"v_mul_f32 v{t}, 0x{f2u(LOG2E):08x}, v{r}")
    g.e(f"v_min_f32 v{t}, 0, v{t}")
    g.e(f"v_exp_f32 v{t}, v{t}")
    g.e(f"v_add_f32 v{r}, 0x{f2u(1e-6):08x}, v{r}")
    g.e(f"v_max_f32 v{r}, 0x{f2u(1e-6):08x}, v{r}")
    g.e(f"v_add_f32 v{r}, v{r}, v{t}")

def k1(g, NA=4, NS=5):
    name = "k1_qkv_kernel"
    kernel_begin(g, name)
    done = "k1_done"
    va = Alloc(4)
    vLane = 2; vT = 3
    sWv = 3
    common_entry(g, 256, vLane, sWv, done)
    g.e("s_load_dwordx2 s[4:5], s[0:1], 8")
    g.e("s_load_dwordx2 s[6:7], s[0:1], 72")
    if PF1:
        g.e(f"s_cmp_eq_u32 s{sWv}, 4")
        g.e("s_cbranch_scc1 k1_pf")
    sMt, sJ = 20, 21
    g.e("s_and_b32 s16, s2, 7")
    g.e("s_lshr_b32 s17, s2, 3")
    g.e("s_and_b32 s18, s16, 1")
    g.e("s_lshl_b32 s18, s18, 3")
    g.e("s_and_b32 s19, s17, 7")
    g.e(f"s_add_u32 s{sMt}, s18, s19")
    g.e("s_lshr_b32 s18, s16, 1")
    g.e("s_lshl_b32 s18, s18, 2")
    g.e("s_lshr_b32 s19, s17, 3")
    g.e(f"s_add_u32 s{sJ}, s18, s19")
    RB, CB, D = 1, 6, 1
    acc = [[va.get(16, 4) for cb in range(CB)]]
    araw = [va.get(4, 4) for _ in range(NA * 4 * RB)]
    bfr = [va.get(4, 4) for _ in range(D * CB)]
    vA = [va.get()]; vBl = va.get(); vBrd = va.get()
    vD = [va.get() for _ in range(6)]
    sRbg = 22
    g.e(f"s_lshl_b32 s{sRbg}, s{sMt}, 2")
    g.e(f"s_add_u32 s{sRbg}, s{sRbg}, s{sWv}")
    g.e(f"s_lshl_b32 s16, s{sRbg}, 16")
    g.e(f"v_lshlrev_b32 v{vA[0]}, 4, v{vLane}")
    g.e(f"v_add_u32 v{vA[0]}, s16, v{vA[0]}")
    emit_vBl_std(g, vBl, vLane, vT)
    emit_dma_lane_std(g, vD[0], vLane, vT, 6144, 16)
    g.e(f"s_mul_i32 s16, s{sWv}, {16*6144}")
    g.e(f"s_lshl_b32 s17, s{sJ}, 7")
    g.e("s_add_u32 s16, s16, s17")
    g.e(f"v_add_u32 v{vD[0]}, s16, v{vD[0]}")
    dma = []
    for kbs in range(2):
        for seg in range(3):
            i = kbs * 3 + seg
            if i: g.e(f"v_add_u32 v{vD[i]}, {kbs*8*6144 + seg*2048}, v{vD[0]}")
            dma.append((vD[i], (kbs * 3 + seg) * 1024, False))
    sWave = 23
    g.e(f"s_mul_i32 s{sWave}, s{sWv}, 6144")
    g.e("s_waitcnt lgkmcnt(0)")
    make_srd(g, 8, 6, 4 * MB, WS_XN)
    make_srd(g, 12, 4, 1024 * 6144)
    pfc = {}
    c = dict(pfc, P=CFG['k1'][0], R=CFG['k1'][1], rate=CFG['k1'][2], name='k1', RB=RB, CB=CB, D=D, NA=NA, NS=NS, KT=16, acc=acc, araw=araw, bfr=bfr, vA=vA, vBl=vBl, vBrd=vBrd,
             srdA=8, srdB=12, sregs=(24, 25, 26, 27, 28, 29, 30, 31), sAprev=32, stage=24576, tileB=64 * 6144,
             dma=dma, sWave=sWave, swap=[1, 1, 0, 0, 0, 0],
             b_imm=lambda kk, cb, q: ((2 * kk + q) * 3 + (cb >> 1)) * 1024 + (cb & 1) * 512)
    gemm_core(g, c)
    make_srd(g, 36, 6, 4 * MB, WS_PQ)
    make_srd(g, 40, 6, 2 * MB, WS_KVP)
    make_srd(g, 44, 6, 64 * 1024, WS_ZP)
    ep = Alloc(araw[0])
    t0 = ep.get(4)
    for cb in range(4):
        for i in range(16):
            emit_phi(g, acc[0][cb] + i, t0 + (i & 3))
    pk = [ep.get(8, 4) for _ in range(6)]
    for cb in range(6):
        for i in range(8):
            g.e(f"v_cvt_pk_bf16_f32 v{pk[cb]+i}, v{acc[0][cb]+2*i}, v{acc[0][cb]+2*i+1}")
    g.e(f"s_lshl_b32 s16, s{sJ}, 12")
    for cb in range(2):
        for s in range(2):
            g.e(f"buffer_store_dwordx4 {vr(pk[cb]+4*s,4)}, v{vA[0]}, s[36:39], s16 offen offset:{(2*cb+s)*1024}")
    ones = ep.get(4, 4)
    for i in range(4): g.e(f"v_mov_b32 v{ones+i}, 0x3f803f80")
    kvz = [acc[0][0], acc[0][1], acc[0][2], acc[0][3]]
    zero_regs(g, kvz[0], 64)
    g.e("s_nop 1")
    for hh in range(2):
        for s in range(2):
            g.e(f"v_mfma_f32_32x32x16_bf16 {vr(kvz[hh],16)}, {vr(pk[2+hh]+4*s,4)}, {vr(pk[4+hh]+4*s,4)}, {vr(kvz[hh],16)}")
            g.e(f"v_mfma_f32_32x32x16_bf16 {vr(kvz[2+hh],16)}, {vr(pk[2+hh]+4*s,4)}, {vr(ones,4)}, {vr(kvz[2+hh],16)}")
    g.e("s_barrier")
    g.e("s_nop 15")
    vL = ep.get(); vL2 = ep.get()
    g.e(f"v_lshlrev_b32 v{vL}, 4, v{vLane}")
    g.e(f"s_lshl_b32 s16, s{sWv}, 14")
    g.e(f"v_add_u32 v{vL2}, s16, v{vL}")
    for it in range(4):
        for q in range(4):
            g.e(f"ds_write_b128 v{vL2}, {vr(kvz[it]+4*q,4)} offset:{it*4096+q*1024}")
    g.e("s_waitcnt lgkmcnt(0)")
    g.e("s_barrier")
    g.e(f"s_lshl_b32 s16, s{sWv}, 12")
    g.e(f"v_add_u32 v{vL2}, s16, v{vL}")
    for w in range(4):
        for q in range(4):
            g.e(f"ds_read_b128 {vr(kvz[w]+4*q,4)}, v{vL2} offset:{w*16384+q*1024}")
    g.e("s_waitcnt lgkmcnt(0)")
    for i in range(16):
        g.e(f"v_add_f32 v{kvz[0]+i}, v{kvz[0]+i}, v{kvz[1]+i}")
        g.e(f"v_add_f32 v{kvz[2]+i}, v{kvz[2]+i}, v{kvz[3]+i}")
        g.e(f"v_add_f32 v{kvz[0]+i}, v{kvz[0]+i}, v{kvz[2]+i}")
    g.e(f"s_and_b32 s16, s{sWv}, 1")
    g.e(f"s_lshl_b32 s17, s{sJ}, 1")
    g.e("s_add_u32 s16, s16, s17")
    g.e(f"s_lshl_b32 s17, s{sMt}, 5")
    g.e("s_add_u32 s16, s16, s17")
    g.e(f"s_cmp_ge_u32 s{sWv}, 2")
    g.e("s_cbranch_scc1 k1_z")
    g.e("s_lshl_b32 s16, s16, 12")
    for q in range(4):
        g.e(f"buffer_store_dwordx4 {vr(kvz[0]+4*q,4)}, v{vL}, s[40:43], s16 offen offset:{q*1024}")
    g.e(f"s_branch {done}" + ("_x" if STAMP else ""))
    g.label("k1_z")
    g.e("s_lshl_b32 s16, s16, 7")
    g.e(f"v_lshrrev_b32 v{vL}, 5, v{vLane}")
    g.e(f"v_lshlrev_b32 v{vL}, 6, v{vL}")
    g.e("s_mov_b32 exec_lo, 1")
    g.e("s_mov_b32 exec_hi, 1")
    for q in range(4):
        g.e(f"buffer_store_dwordx4 {vr(kvz[0]+4*q,4)}, v{vL}, s[44:47], s16 offen offset:{q*16}")
    if STAMP:
        g.label(done + "_x")
        stamp(g, 4)
        g.e("s_waitcnt vmcnt(0)")
        stamp(g, 5)
        stamp_flush(g, 8)
    g.label(done)
    g.e("s_endpgm")
    if PF1:
        g.label("k1_pf")
        g.e("s_load_dwordx2 s[48:49], s[0:1], 16")
        g.e("s_load_dwordx4 s[52:55], s[0:1], 32")
        g.e("s_load_dwordx2 s[56:57], s[0:1], 48")
        g.e(f"s_lshl_b32 s16, s2, {PFS+6}")
        g.e(f"v_lshl_add_u32 v4, v{vLane}, {PFS}, s16")
        g.e("s_waitcnt lgkmcnt(0)")
        make_srd(g, 8, 48, 2 * MB)
        make_srd(g, 12, 52, 1024 * 7168)
        make_srd(g, 16, 54, 1024 * 7168)
        make_srd(g, 24, 56, 3584 * 2048)
        SH = PFS
        step = 256 << (SH + 6)
        jobs = [(8, i) for i in range(-(-2 * MB // step))] + [(x, i) for i in range(-(-7168 * 1024 // step)) for x in (12, 16)]
        if os.environ.get("GWOONLY"): jobs = jobs[:2]
        start = CFG['k1'][3] if len(CFG['k1']) > 3 else 12
        per = CFG['k1'][4] if len(CFG['k1']) > 4 else 4
        for b in range(c['nbar'] + 2):
            g.e("s_barrier")
            if b < start: continue
            for _ in range(per):
                if jobs:
                    srd, i = jobs.pop(0)
                    g.e(f"s_mov_b32 s28, {i*step}")
                    g.e(f"buffer_load_dword v5, v4, {sr(srd,4)}, s28 offen")
        assert not jobs
        g.e("s_waitcnt vmcnt(0)")
        g.e("s_endpgm")
    return name, va.n, (256, 320 if PF1 else 256, NS * 24576)

def k2(g):
    name = "k2_att_kernel"
    kernel_begin(g, name)
    done = "k2_done"
    vLane = 2; sWv = 3
    common_entry(g, 256, vLane, sWv, done)
    g.e("s_load_dwordx2 s[6:7], s[0:1], 72")
    sH, sC = 20, 21
    g.e("s_and_b32 s16, s2, 7")
    g.e("s_lshl_b32 s16, s16, 2")
    g.e("s_bfe_u32 s17, s2, 0x20003")
    g.e(f"s_add_u32 s{sH}, s16, s17")
    g.e(f"s_lshr_b32 s{sC}, s2, 5")
    g.e(f"v_lshlrev_b32 v3, 4, v{vLane}")
    g.e(f"v_lshrrev_b32 v4, 5, v{vLane}")
    g.e("v_lshlrev_b32 v4, 6, v4")
    g.e("s_waitcnt lgkmcnt(0)")
    make_srd(g, 8, 6, 2 * MB, WS_KVP)
    make_srd(g, 12, 6, 64 * 1024, WS_ZP)
    make_srd(g, 24, 6, 4 * MB, WS_PQ)
    make_srd(g, 28, 6, 4 * MB, WS_O)
    g.e(f"s_lshl_b32 s16, s{sWv}, 7")
    g.e(f"s_add_u32 s16, s16, s{sH}")
    KV = 16; Z = 80
    for i in range(4):
        g.e(f"s_add_u32 s17, s16, {32*i}")
        g.e("s_lshl_b32 s18, s17, 12")
        g.e("s_lshl_b32 s19, s17, 7")
        for q in range(4):
            g.e(f"buffer_load_dwordx4 {vr(KV+16*i+4*q,4)}, v3, s[8:11], s18 offen offset:{q*1024}")
        for q in range(4):
            g.e(f"buffer_load_dwordx4 {vr(Z+16*i+4*q,4)}, v4, s[12:15], s19 offen offset:{q*16}")
    PQ = 144
    g.e(f"s_lshl_b32 s16, s{sC}, 3")
    g.e(f"s_lshl_b32 s17, s{sWv}, 1")
    g.e("s_add_u32 s16, s16, s17")
    g.e("s_lshl_b32 s16, s16, 16")
    g.e(f"s_lshl_b32 s17, s{sH}, 11")
    g.e("s_add_u32 s22, s16, s17")
    g.e("s_add_u32 s23, s22, 65536")
    for b in range(2):
        for s in range(2):
            g.e(f"buffer_load_dwordx4 {vr(PQ+8*b+4*s,4)}, v3, s[24:27], s{22+b} offen offset:{s*1024}")
    stamp(g, 6)
    g.e("s_waitcnt vmcnt(4)")
    stamp(g, 1)
    for base in (KV, Z):
        for i in range(16):
            g.e(f"v_add_f32 v{base+i}, v{base+i}, v{base+16+i}")
            g.e(f"v_add_f32 v{base+32+i}, v{base+32+i}, v{base+48+i}")
            g.e(f"v_add_f32 v{base+i}, v{base+i}, v{base+32+i}")
    g.e(f"s_lshl_b32 s16, s{sWv}, 13")
    g.e("v_add_u32 v5, s16, v3")
    for k, base in enumerate((KV, Z)):
        for q in range(4):
            g.e(f"ds_write_b128 v5, {vr(base+4*q,4)} offset:{k*4096+q*1024}")
    g.e("s_waitcnt lgkmcnt(0)")
    g.e("s_barrier")
    stamp(g, 2)
    for k, base in enumerate((KV, Z)):
        for w in range(4):
            for q in range(4):
                g.e(f"ds_read_b128 {vr(base+16*w+4*q,4)}, v3 offset:{w*8192+k*4096+q*1024}")
        g.e("s_waitcnt lgkmcnt(0)")
        for i in range(16):
            g.e(f"v_add_f32 v{base+i}, v{base+i}, v{base+16+i}")
            g.e(f"v_add_f32 v{base+32+i}, v{base+32+i}, v{base+48+i}")
            g.e(f"v_add_f32 v{base+i}, v{base+i}, v{base+32+i}")
    KF = 160; ZF = 168
    for i in range(8):
        g.e(f"v_cvt_pk_bf16_f32 v{KF+i}, v{KV+2*i}, v{KV+2*i+1}")
        g.e(f"v_cvt_pk_bf16_f32 v{ZF+i}, v{Z+2*i}, v{Z+2*i+1}")
    NUM = [16, 32]; DEN = [48, 64]
    zero_regs(g, 16, 64)
    g.e("s_waitcnt vmcnt(0)")
    stamp(g, 3)
    for b in range(2):
        for s in range(2):
            g.e(f"v_mfma_f32_32x32x16_bf16 {vr(NUM[b],16)}, {vr(KF+4*s,4)}, {vr(PQ+8*b+4*s,4)}, {vr(NUM[b],16)}")
            g.e(f"v_mfma_f32_32x32x16_bf16 {vr(DEN[b],16)}, {vr(ZF+4*s,4)}, {vr(PQ+8*b+4*s,4)}, {vr(DEN[b],16)}")
    g.e("s_nop 15")
    for b in range(2):
        g.e(f"v_add_f32 v{DEN[b]}, 0x{f2u(1e-6):08x}, v{DEN[b]}")
        g.e(f"v_rcp_f32 v{DEN[b]}, v{DEN[b]}")
    g.e("s_nop 0")
    OUT = 80
    for b in range(2):
        for i in range(16):
            g.e(f"v_mul_f32 v{NUM[b]+i}, v{NUM[b]+i}, v{DEN[b]}")
        for i in range(8):
            g.e(f"v_cvt_pk_bf16_f32 v{OUT+8*b+i}, v{NUM[b]+2*i}, v{NUM[b]+2*i+1}")
        for s in range(2):
            g.e(f"buffer_store_dwordx4 {vr(OUT+8*b+4*s,4)}, v3, s[28:31], s{22+b} offen offset:{s*1024}")
    if STAMP:
        g.label(done + "_x")
        stamp(g, 4)
        g.e("s_waitcnt vmcnt(0)")
        stamp(g, 5)
        stamp_flush(g, 8)
    g.label(done)
    g.e("s_endpgm")
    return name, 176, (256, 256, 32768)

def k35(g, which, NA=8, NS=8):
    is3 = which == 3
    name = "k3_wo_kernel" if is3 else "k5_down_kernel"
    KT = 16 if is3 else 56
    KS = KT * 4
    kernel_begin(g, name)
    done = f"k{which}_done"
    va = Alloc(4)
    vLane = 2; vT = 3; sWv = 3
    common_entry(g, 256, vLane, sWv, done)
    g.e(f"s_load_dwordx2 s[4:5], s[0:1], {16 if is3 else 48}")
    g.e("s_load_dwordx2 s[6:7], s[0:1], 72")
    g.e(f"s_load_dwordx2 s[34:35], s[0:1], {0 if is3 else 56}")
    if is3: g.e("s_load_dwordx4 s[44:47], s[0:1], 32")
    sMt, sNt = 20, 21
    g.e("s_and_b32 s16, s2, 7")
    g.e("s_lshr_b32 s17, s2, 3")
    g.e("s_lshr_b32 s18, s16, 1")
    g.e("s_lshl_b32 s18, s18, 2")
    g.e("s_and_b32 s19, s17, 3")
    g.e(f"s_add_u32 s{sMt}, s18, s19")
    g.e("s_and_b32 s18, s16, 1")
    g.e("s_lshl_b32 s18, s18, 3")
    g.e("s_lshr_b32 s19, s17, 2")
    g.e(f"s_add_u32 s{sNt}, s18, s19")
    RB, CB, D = 1, 2, 4
    acc = [[va.get(16, 4) for cb in range(CB)]]
    res = va.get(16, 4)
    araw = [va.get(4, 4) for _ in range(NA * 4 * RB)]
    bfr = [va.get(4, 4) for _ in range(D * CB)]
    vA = [va.get()]; vBl = va.get(); vBrd = va.get()
    vD = [va.get() for _ in range(2)]
    vH = va.get(); vR = va.get()
    sRbg = 22
    g.e(f"s_lshl_b32 s{sRbg}, s{sMt}, 2")
    g.e(f"s_add_u32 s{sRbg}, s{sRbg}, s{sWv}")
    g.e(f"s_mul_i32 s16, s{sRbg}, {KS*1024}")
    g.e(f"v_lshlrev_b32 v{vA[0]}, 4, v{vLane}")
    g.e(f"v_add_u32 v{vA[0]}, s16, v{vA[0]}")
    g.e(f"s_mul_i32 s16, s{sRbg}, {HSTR}")
    g.e(f"s_lshl_b32 s17, s{sNt}, 12")
    g.e("s_add_u32 s16, s16, s17")
    g.e(f"v_lshlrev_b32 v{vH}, 4, v{vLane}")
    g.e(f"v_add_u32 v{vH}, s16, v{vH}")
    g.e(f"v_and_b32 v{vR}, 31, v{vLane}")
    g.e(f"v_lshlrev_b32 v{vR}, 11, v{vR}")
    g.e(f"v_lshrrev_b32 v{vT}, 5, v{vLane}")
    g.e(f"v_lshl_add_u32 v{vR}, v{vT}, 4, v{vR}")
    g.e(f"s_lshl_b32 s16, s{sRbg}, 16")
    g.e(f"s_lshl_b32 s17, s{sNt}, 7")
    g.e("s_add_u32 s16, s16, s17")
    g.e(f"v_add_u32 v{vR}, s16, v{vR}")
    emit_vBl_std(g, vBl, vLane, vT)
    emit_dma_lane_std(g, vD[0], vLane, vT, 2048, 16)
    g.e(f"s_mul_i32 s16, s{sWv}, {16*2048}")
    g.e(f"s_lshl_b32 s17, s{sNt}, 7")
    g.e("s_add_u32 s16, s16, s17")
    g.e(f"v_add_u32 v{vD[0]}, s16, v{vD[0]}")
    g.e(f"v_add_u32 v{vD[1]}, {8*2048}, v{vD[0]}")
    dma = [(vD[0], 0, False), (vD[1], 1024, False)]
    sWave = 23
    g.e(f"s_lshl_b32 s{sWave}, s{sWv}, 11")
    g.e("s_waitcnt lgkmcnt(0)")
    if is3: make_srd(g, 8, 6, 4 * MB, WS_O)
    else: make_srd(g, 8, 6, 64 * 224 * 1024, WS_ACT)
    make_srd(g, 12, 4, KT * 64 * 2048)
    make_srd(g, 36, 6, 64 * HSTR, WS_H)
    make_srd(g, 40, 34, 4 * MB)
    def hook_pre(st):
        for j in range(4):
            if is3: st.vmop(f"buffer_load_dwordx4 {vr(res+4*j,4)}, v{vR}, s[40:43], 0 offen offset:{j*32}", ('X', j))
            else: st.vmop(f"buffer_load_dwordx4 {vr(res+4*j,4)}, v{vH}, s[36:39], 0 offen offset:{j*1024}", ('X', j))
    cf = CFG[f'k{which}']
    at = {}
    if is3:
        vC = va.get()
        spare = [va.get(4, 4) for _ in range(9)]
        cdst = spare + araw[0:4] + araw[4:7]
        T0 = cf[3] if len(cf) > 3 else 8
        ctile = [T0] * 9 + [9] * 4 + [10] * 3
        def cs_setup(st, bq):
            n0 = len(g.lines)
            g.e("s_sub_u32 s17, s2, 112")
            g.e("s_cmp_ge_u32 s2, 112")
            g.e("s_cselect_b32 s17, s17, s2")
            g.e("s_cselect_b32 s50, 1, 0")
            g.e("s_cselect_b32 s4, s46, s44")
            g.e("s_cselect_b32 s5, s47, s45")
            g.e("s_lshr_b32 s51, s17, 2")
            g.e("s_and_b32 s52, s2, 3")
            g.e(f"v_lshrrev_b32 v{vC}, 4, v{vLane}")
            g.e(f"v_mul_u32_u24 v{vC}, 7168, v{vC}")
            g.e(f"v_and_b32 v{vT}, 15, v{vLane}")
            g.e(f"v_lshl_add_u32 v{vC}, v{vT}, 4, v{vC}")
            g.e("s_lshl_b32 s19, s52, 2")
            g.e(f"s_add_u32 s19, s19, s{sWv}")
            g.e(f"s_mul_i32 s19, s19, {64*7168}")
            g.e("s_lshl_b32 s18, s51, 8")
            g.e("s_add_u32 s19, s19, s18")
            g.e("s_cmp_ge_u32 s2, 224")
            g.e(f"s_cselect_b32 s19, {OOB}, s19")
            g.e(f"v_add_u32 v{vC}, s19, v{vC}")
            make_srd(g, 56, 4, 1024 * 7168)
            for l in g.lines[n0:]: st.i(l.strip())
            del g.lines[n0:]
        at.setdefault(T0, []).append(cs_setup)
        for i in range(16):
            def ld(st, bq, i=i):
                def f():
                    st.i(f"s_mov_b32 s33, {i*4*7168}")
                    st.vmop(f"buffer_load_dwordx4 {vr(cdst[i],4)}, v{vC}, s[56:59], s33 offen", ('CS', i))
                bq.append(f)
            at.setdefault(ctile[i], []).append(ld)
    c = dict(P=cf[0], R=cf[1], rate=cf[2], hook_pre=hook_pre, at_tile=at, no_final_vm=is3, name=f'k{which}', RB=RB, CB=CB, D=D, NA=NA, NS=NS, KT=KT, acc=acc, araw=araw, bfr=bfr, vA=vA, vBl=vBl, vBrd=vBrd,
             srdA=8, srdB=12, sregs=(24, 25, 26, 27, 28, 29, 30, 31), sAprev=32, stage=8192, tileB=64 * 2048,
             dma=dma, sWave=sWave, swap=[1, 1], bar_cb=0,
             b_imm=lambda kk, cb, q: (2 * kk + q) * 1024 + cb * 512)
    gemm_core(g, c)
    ep = Alloc(araw[8])
    t = ep.get(4)
    if is3:
        for j in range(4):
            g.e(f"v_permlane32_swap_b32 v{res+4*j}, v{res+4*j+2}")
            g.e(f"v_permlane32_swap_b32 v{res+4*j+1}, v{res+4*j+3}")
        g.e("s_nop 1")
    a0 = acc[0][0]
    for d in range(16):
        g.e(f"v_lshlrev_b32 v{t}, 16, v{res+d}")
        g.e(f"v_and_b32 v{t+1}, 0xffff0000, v{res+d}")
        g.e(f"v_add_f32 v{a0+2*d}, v{a0+2*d}, v{t}")
        g.e(f"v_add_f32 v{a0+2*d+1}, v{a0+2*d+1}, v{t+1}")
    out = ep.get(16, 4)
    for d in range(16):
        g.e(f"v_cvt_pk_bf16_f32 v{out+d}, v{a0+2*d}, v{a0+2*d+1}")
    if is3:
        for j in range(4):
            g.e(f"buffer_store_dwordx4 {vr(out+4*j,4)}, v{vH}, s[36:39], 0 offen offset:{j*1024}")
        S = ep.get(2, 2); S2 = ep.get(2, 2)
        g.e(f"v_mov_b32 v{S}, 0")
        g.e(f"v_mov_b32 v{S+1}, 0")
        for d in range(16):
            g.e(f"v_lshlrev_b32 v{t}, 16, v{out+d}")
            g.e(f"v_and_b32 v{t+1}, 0xffff0000, v{out+d}")
            g.e(f"v_add_f32 v{S}, v{S}, v{t}")
            g.e(f"v_fma_f32 v{S+1}, v{t}, v{t}, v{S+1}")
            g.e(f"v_add_f32 v{S}, v{S}, v{t+1}")
            g.e(f"v_fma_f32 v{S+1}, v{t+1}, v{t+1}, v{S+1}")
        g.e(f"v_mov_b32 v{S2}, v{S}")
        g.e(f"v_mov_b32 v{S2+1}, v{S+1}")
        g.e("s_nop 1")
        g.e(f"v_permlane32_swap_b32 v{S}, v{S2}")
        g.e(f"v_permlane32_swap_b32 v{S+1}, v{S2+1}")
        g.e("s_nop 1")
        g.e(f"v_add_f32 v{S}, v{S}, v{S2}")
        g.e(f"v_add_f32 v{S+1}, v{S+1}, v{S2+1}")
        make_srd(g, 44, 6, 256 * 1024, WS_ST)
        g.e(f"v_and_b32 v{t}, 31, v{vLane}")
        g.e(f"v_lshlrev_b32 v{t}, 3, v{t}")
        g.e(f"s_lshl_b32 s16, s{sRbg}, 8")
        g.e(f"s_lshl_b32 s17, s{sNt}, 14")
        g.e("s_add_u32 s16, s16, s17")
        g.e("s_mov_b32 exec_hi, 0")
        g.e(f"buffer_store_dwordx2 {vr(S,2)}, v{t}, s[44:47], s16 offen")
        g.e("s_mov_b32 exec_hi, -1")
        idn = ep.get(4, 4); Dc = ep.get(4, 4); vW = ep.get(); R4 = ep.get(4)
        g.e(f"v_and_b32 v{t}, 15, v{vLane}")
        g.e(f"v_and_b32 v{t+1}, 1, v{vLane}")
        g.e(f"v_lshlrev_b32 v{t+1}, 4, v{t+1}")
        g.e(f"v_mov_b32 v{t+2}, 0x3f80")
        g.e(f"v_lshlrev_b32 v{t+1}, v{t+1}, v{t+2}")
        g.e(f"v_lshrrev_b32 v{t}, 1, v{t}")
        for j in range(4):
            g.e(f"v_cmp_eq_u32 vcc, {j}, v{t}")
            g.e(f"v_cndmask_b32 v{idn+j}, 0, v{t+1}, vcc")
        g.e(f"v_and_b32 v{vW}, 15, v{vLane}")
        g.e(f"v_lshlrev_b32 v{vW}, 5, v{vW}")
        g.e(f"v_bfe_u32 v{t}, v{vLane}, 4, 1")
        g.e(f"v_lshl_add_u32 v{vW}, v{t}, 4, v{vW}")
        g.e(f"s_lshl_b32 s16, s{sWv}, 9")
        g.e(f"s_add_u32 s16, s16, {NS*8192}")
        g.e(f"v_add_u32 v{vW}, s16, v{vW}")
        make_srd(g, 44, 6, 7168 * 16, WS_S)
        for i in range(16):
            g.e(f"s_waitcnt vmcnt({5 + 15 - i})")
            g.e(f"v_mfma_f32_16x16x32_bf16 {vr(Dc,4)}, {vr(idn,4)}, {vr(cdst[i],4)}, {vr(Dc,4) if i else 0}")
        g.e("s_nop 15")
        g.e("s_mov_b32 exec_hi, 0")
        g.e(f"ds_write_b128 v{vW}, {vr(Dc,4)}")
        g.e("s_mov_b32 exec_hi, -1")
        g.e("s_waitcnt lgkmcnt(0)")
        g.e("s_barrier")
        g.e(f"s_cmp_ge_u32 s{sWv}, 2")
        g.e(f"s_cbranch_scc1 {done}" + ("_x" if STAMP else ""))
        g.e(f"v_lshlrev_b32 v{t}, 2, v0")
        g.e(f"v_add_u32 v{t}, {NS*8192}, v{t}")
        for w in range(4): g.e(f"ds_read_b32 v{R4+w}, v{t} offset:{w*512}")
        g.e("s_mul_i32 s19, s50, 3584")
        g.e("s_lshl_b32 s18, s51, 7")
        g.e("s_add_u32 s19, s19, s18")
        g.e("s_lshl_b32 s19, s19, 4")
        g.e("s_lshl_b32 s18, s52, 2")
        g.e("s_add_u32 s19, s19, s18")
        g.e("s_cmp_ge_u32 s2, 224")
        g.e(f"s_cbranch_scc1 {done}" + ("_x" if STAMP else ""))
        g.e(f"v_lshlrev_b32 v{t}, 4, v0")
        g.e("s_waitcnt lgkmcnt(0)")
        g.e(f"v_add_f32 v{R4}, v{R4}, v{R4+1}")
        g.e(f"v_add_f32 v{R4+2}, v{R4+2}, v{R4+3}")
        g.e(f"v_add_f32 v{R4}, v{R4}, v{R4+2}")
        g.e(f"buffer_store_dword v{R4}, v{t}, s[44:47], s19 offen")
    else:
        g.e("s_nop 1")
        for j in range(4):
            g.e(f"v_permlane32_swap_b32 v{out+4*j}, v{out+4*j+2}")
            g.e(f"v_permlane32_swap_b32 v{out+4*j+1}, v{out+4*j+3}")
        g.e("s_nop 1")
        for j in range(4):
            g.e(f"buffer_store_dwordx4 {vr(out+4*j,4)}, v{vR}, s[40:43], 0 offen offset:{j*32}")
    if STAMP:
        g.label(done + "_x")
        stamp(g, 4)
        g.e("s_waitcnt vmcnt(0)")
        stamp(g, 5)
        stamp_flush(g, 8)
    g.label(done)
    g.e("s_endpgm")
    return name, va.n, (256, 256, NS * 8192 + (2048 if is3 else 0))

def k4(g, NA=2, NS=5):
    name = "k4_ffn_kernel"
    kernel_begin(g, name)
    done = "k4_done"
    va = Alloc(4)
    vLane = 2; vT = 3; sWv = 3
    UOFF = 14464; STAGE = 28800
    NA = CFG['k4'][3] if len(CFG['k4']) > 3 else NA
    common_entry(g, 256, vLane, sWv, done)
    g.e("s_load_dwordx4 s[36:39], s[0:1], 32")
    g.e("s_load_dwordx2 s[6:7], s[0:1], 72")
    if PF4: g.e("s_load_dwordx2 s[48:49], s[0:1], 48")
    sMt, sNt = 20, 21
    g.e("s_and_b32 s16, s2, 7")
    g.e("s_lshr_b32 s17, s2, 3")
    g.e("s_and_b32 s18, s16, 1")
    g.e("s_lshl_b32 s18, s18, 2")
    g.e("s_and_b32 s19, s17, 3")
    g.e(f"s_add_u32 s{sMt}, s18, s19")
    g.e("s_lshr_b32 s18, s16, 1")
    g.e("s_lshl_b32 s18, s18, 3")
    g.e("s_lshr_b32 s19, s17, 2")
    g.e(f"s_add_u32 s{sNt}, s18, s19")
    RB, CB, D = 1, 7, 1
    acc = [[va.get(16, 4) for cb in range(CB)]]
    araw = [va.get(4, 4) for _ in range(NA * 4 * RB)]
    bfr = [va.get(4, 4) for _ in range(D * CB)]
    st0 = va.get(16, 4)
    Sv4 = va.get(28, 4)
    tmp = [st0 + i for i in range(3)]
    vA = [va.get()]; vBl = va.get(); vBrd = va.get()
    vD = [va.get() for _ in range(4)]
    vC1 = va.get(); vC2 = va.get(); vI2 = va.get(); vS = va.get(); vSa = va.get()
    sRbg = 22
    g.e(f"s_lshl_b32 s{sRbg}, s{sMt}, 3")
    g.e(f"s_add_u32 s{sRbg}, s{sRbg}, s{sWv}")
    g.e(f"s_mul_i32 s16, s{sRbg}, {HSTR}")
    g.e(f"v_lshlrev_b32 v{vA[0]}, 4, v{vLane}")
    g.e(f"v_add_u32 v{vA[0]}, s16, v{vA[0]}")
    g.e(f"v_lshrrev_b32 v{vT}, 5, v{vLane}")
    g.e(f"v_bfe_u32 v{vBl}, v{vLane}, 2, 2")
    g.e(f"v_lshl_add_u32 v{vT}, v{vT}, 2, v{vBl}")
    g.e(f"v_mul_u32_u24 v{vBl}, 224, v{vT}")
    g.e(f"v_bfe_u32 v{vT}, v{vLane}, 4, 1")
    g.e(f"v_mul_u32_u24 v{vT}, {UOFF}, v{vT}")
    g.e(f"v_add_u32 v{vBl}, v{vBl}, v{vT}")
    g.e(f"v_and_b32 v{vT}, 3, v{vLane}")
    g.e(f"v_lshl_add_u32 v{vBl}, v{vT}, 3, v{vBl}")
    g.e(f"s_lshr_b32 s16, s{sWv}, 1")
    g.e(f"s_mul_i32 s17, s16, {16*7168}")
    g.e(f"s_mul_i32 s18, s{sNt}, 224")
    g.e("s_add_u32 s17, s17, s18")
    for i in range(4):
        g.e(f"v_add_u32 v{tmp[0]}, {64*i}, v{vLane}")
        g.e(f"v_mul_u32_u24 v{tmp[1]}, 4682, v{tmp[0]}")
        g.e(f"v_lshrrev_b32 v{tmp[1]}, 16, v{tmp[1]}")
        g.e(f"v_mul_u32_u24 v{tmp[2]}, 14, v{tmp[1]}")
        g.e(f"v_sub_u32 v{tmp[2]}, v{tmp[0]}, v{tmp[2]}")
        g.e(f"v_mul_u32_u24 v{tmp[1]}, 7168, v{tmp[1]}")
        g.e(f"v_lshl_add_u32 v{tmp[1]}, v{tmp[2]}, 4, v{tmp[1]}")
        g.e(f"v_add_u32 v{vD[i]}, s17, v{tmp[1]}")
    dma = [(vD[i], i * 1024, i == 3) for i in range(4)]
    sWave = 23
    g.e(f"s_mul_i32 s{sWave}, s16, 3584")
    g.e(f"s_and_b32 s18, s{sWv}, 1")
    g.e(f"s_mul_i32 s19, s18, {UOFF}")
    g.e(f"s_add_u32 s{sWave}, s{sWave}, s19")
    g.e("s_waitcnt lgkmcnt(0)")
    g.e("s_cmp_eq_u32 s18, 0")
    g.e("s_cselect_b32 s4, s36, s38")
    g.e("s_cselect_b32 s5, s37, s39")
    make_srd(g, 8, 6, 64 * HSTR, WS_H)
    make_srd(g, 12, 4, 1024 * 7168)
    at = {}
    def late_setup(st):
        n0 = len(g.lines)
        make_srd(g, 40, 6, 256 * 1024, WS_ST)
        make_srd(g, 44, 6, 64 * 224 * 1024, WS_ACT)
        g.e(f"v_and_b32 v{vS}, 31, v{vLane}")
        g.e(f"v_lshlrev_b32 v{vS}, 3, v{vS}")
        g.e(f"v_lshrrev_b32 v{vT}, 5, v{vLane}")
        g.e(f"v_lshl_add_u32 v{vS}, v{vT}, 14, v{vS}")
        g.e(f"s_lshl_b32 s16, s{sRbg}, 8")
        g.e(f"v_add_u32 v{vS}, s16, v{vS}")
        make_srd(g, 56, 6, 7168 * 16, WS_S)
        g.e(f"v_bfe_u32 v{vT}, v{vLane}, 4, 1")
        g.e(f"v_mul_u32_u24 v{vT}, {14336*4}, v{vT}")
        g.e(f"v_and_b32 v{vSa}, 15, v{vLane}")
        g.e(f"v_lshl_add_u32 v{vSa}, v{vSa}, 4, v{vT}")
        g.e(f"s_mul_i32 s16, s{sNt}, {448*4}")
        g.e(f"v_add_u32 v{vSa}, s16, v{vSa}")
        if PF4:
            make_srd(g, 52, 48, 3584 * 2048)
            g.e("s_lshl_b32 s16, s2, 12")
            g.e(f"v_lshl_add_u32 v{vP}, v0, 3, s16")
        for l in g.lines[n0:]: st.i(l.strip())
        del g.lines[n0:]
    if PF4:
        vP = va.get(); vJ = va.get()
        for it in range(8):
            def pf(st, bq, it=it):
                def f():
                    st.i(f"s_mov_b32 s33, {it*MB}")
                    st.vmop(f"buffer_load_dword v{vJ}, v{vP}, s[52:55], s33 offen", ('P', it))
                bq.append(f)
            at.setdefault(2 + it, []).append(pf)
    def ld_stats(st, bq):
        for j in range(8):
            def f(j=j):
                st.i(f"s_mov_b32 s33, {j*32768}")
                st.vmop(f"buffer_load_dwordx2 {vr(st0+2*j,2)}, v{vS}, s[40:43], s33 offen", ('S', j))
            bq.append(f)
        for cb in range(CB):
            bq.append(lambda cb=cb: st.vmop(f"buffer_load_dwordx4 {vr(Sv4+4*cb,4)}, v{vSa}, s[56:59], 0 offen offset:{cb*256}", ('C', cb)))
    at.setdefault(1, []).append(ld_stats)
    C1 = -2.0 * 0.7978845608028654 * LOG2E
    C2 = C1 * 0.044715
    def corr(st, bq):
        st.need('vm', [('S', j) for j in range(8)] + [('C', cb) for cb in range(CB)])
        for j in (8, 4, 2):
            for i in range(j):
                st.i(f"v_add_f32 v{st0+i}, v{st0+i}, v{st0+j+i}")
        st.i(f"v_mov_b32 v{st0+2}, v{st0}")
        st.i(f"v_mov_b32 v{st0+3}, v{st0+1}")
        st.i("s_nop 1")
        st.i(f"v_permlane32_swap_b32 v{st0}, v{st0+2}")
        st.i(f"v_permlane32_swap_b32 v{st0+1}, v{st0+3}")
        st.i("s_nop 1")
        st.i(f"v_add_f32 v{st0}, v{st0}, v{st0+2}")
        st.i(f"v_add_f32 v{st0+1}, v{st0+1}, v{st0+3}")
        st.i(f"v_mul_f32 v{st0}, 0x{f2u(-1/1024):08x}, v{st0}")
        st.i(f"v_mul_f32 v{st0+1}, 0x{f2u(1/1024):08x}, v{st0+1}")
        st.i(f"v_fma_f32 v{st0+1}, -v{st0}, v{st0}, v{st0+1}")
        st.i(f"v_max_f32 v{st0+1}, 0, v{st0+1}")
        st.i(f"v_add_f32 v{vI2}, 0x{f2u(1e-5):08x}, v{st0+1}")
        st.i(f"v_rsq_f32 v{st0+1}, v{vI2}")
        Bf = st0 + 4; Af = [st0 + 8, st0 + 12]
        st.i(f"v_cmp_gt_u32 vcc, 32, v{vLane}")
        st.i(f"v_cndmask_b32 v{st0}, 0, v{st0}, vcc")
        st.i(f"v_cvt_pk_bf16_f32 v{Bf+1}, v{st0}, 0")
        st.i(f"v_lshlrev_b32 v{st0+2}, 16, v{Bf+1}")
        st.i(f"v_sub_f32 v{st0+2}, v{st0}, v{st0+2}")
        st.i(f"v_cvt_pk_bf16_f32 v{Bf}, v{st0}, v{st0+2}")
        st.i(f"v_mov_b32 v{Bf+2}, 0")
        st.i(f"v_mov_b32 v{Bf+3}, 0")
        st.i(f"v_mul_f32 v{vC1}, 0x{f2u(C1):08x}, v{st0+1}")
        st.i(f"v_mul_f32 v{vC2}, v{st0+1}, v{st0+1}")
        st.i(f"v_mul_f32 v{vC2}, v{vC2}, v{st0+1}")
        st.i(f"v_mul_f32 v{vC2}, 0x{f2u(C2):08x}, v{vC2}")
        for a_ in Af:
            st.i(f"v_mov_b32 v{a_+2}, 0")
            st.i(f"v_mov_b32 v{a_+3}, 0")
        for cb in range(CB):
            a_ = Af[cb & 1]
            S_ = Sv4 + 4 * cb
            st.i(f"v_add_f32 v{S_}, v{S_}, v{S_+1}")
            st.i(f"v_add_f32 v{S_+2}, v{S_+2}, v{S_+3}")
            st.i(f"v_add_f32 v{S_}, v{S_}, v{S_+2}")
            st.i(f"v_cvt_pk_bf16_f32 v{a_}, v{S_}, v{S_}")
            st.i(f"v_and_b32 v{st0+2}, 0xffff0000, v{a_}")
            st.i(f"v_sub_f32 v{st0+2}, v{S_}, v{st0+2}")
            st.i(f"v_cvt_pk_bf16_f32 v{a_+1}, v{st0+2}, 0")
            st.i("s_nop 1")
            st.i(f"v_mfma_f32_32x32x16_bf16 {vr(acc[0][cb],16)}, {vr(a_,4)}, {vr(Bf,4)}, {vr(acc[0][cb],16)}")
    at.setdefault(8, []).append(corr)
    c = dict(P=CFG['k4'][0], R=CFG['k4'][1], rate=CFG['k4'][2], name='k4', RB=RB, CB=CB, D=D, NA=NA, NS=NS, KT=16, acc=acc, araw=araw, bfr=bfr, vA=vA, vBl=vBl, vBrd=vBrd,
             hook_pre=late_setup, at_tile=at,
             srdA=8, srdB=12, sregs=(24, 25, 26, 27, 28, 29, 30, 31), sAprev=32, stage=STAGE, tileB=64 * 7168,
             dma=dma, sWave=sWave, swap=[1] * 7,
             b_imm=lambda kk, cb, q: (16 * kk + 8 * q) * 224 + cb * 32)
    gemm_core(g, c)
    ep = Alloc(araw[0])
    T = ep.get(8); O = [ep.get(4, 4) for _ in range(2)]
    vO = ep.get()
    g.e(f"s_mul_i32 s18, s{sRbg}, 224")
    g.e(f"s_mul_i32 s19, s{sNt}, 7")
    g.e("s_add_u32 s18, s18, s19")
    g.e("s_lshl_b32 s18, s18, 10")
    g.e(f"v_lshlrev_b32 v{vO}, 4, v{vLane}")
    g.e(f"v_add_u32 v{vO}, s18, v{vO}")
    g.e("s_mov_b32 s19, 4096")
    for cb in range(CB):
        a = acc[0][cb]
        for i in range(8): g.e(f"v_mul_f32 v{T+i}, v{a+i}, v{a+i}")
        for i in range(8): g.e(f"v_fma_f32 v{T+i}, v{T+i}, v{vC2}, v{vC1}")
        for i in range(8): g.e(f"v_mul_f32 v{T+i}, v{T+i}, v{a+i}")
        for i in range(8): g.e(f"v_exp_f32 v{T+i}, v{T+i}")
        for i in range(8): g.e(f"v_mul_f32 v{a+i}, v{a+i}, v{a+8+i}")
        for i in range(8): g.e(f"v_fma_f32 v{T+i}, v{T+i}, v{vI2}, v{vI2}")
        for i in range(8): g.e(f"v_rcp_f32 v{T+i}, v{T+i}")
        g.e("s_nop 0")
        for i in range(8): g.e(f"v_mul_f32 v{a+i}, v{a+i}, v{T+i}")
        o = O[cb & 1]
        for i in range(4): g.e(f"v_cvt_pk_bf16_f32 v{o+i}, v{a+2*i}, v{a+2*i+1}")
        if cb < 4: g.e(f"buffer_store_dwordx4 {vr(o,4)}, v{vO}, s[44:47], 0 offen offset:{cb*1024}")
        else: g.e(f"buffer_store_dwordx4 {vr(o,4)}, v{vO}, s[44:47], s19 offen offset:{(cb-4)*1024}")
    if STAMP:
        g.label(done + "_x")
        stamp(g, 4)
        g.e("s_waitcnt vmcnt(0)")
        stamp(g, 5)
        stamp_flush(g, 8)
    g.label(done)
    g.e("s_endpgm")
    return name, va.n, (256, 512, NS * STAGE)

def main(out):
    g = G()
    ks = []
    ks.append(k0(g))
    ks.append(k1(g))
    ks.append(k2(g))
    ks.append(k35(g, 3))
    ks.append(k4(g))
    ks.append(k35(g, 5))
    head = []
    for name, nv, (grid, blk, lds) in ks:
        head.append(f"; @launch kernel={name} grid=({grid},1,1) block=({blk},1,1) lds={lds}")
    head.append('.amdgcn_target "amdgcn-amd-amdhsa--gfx950"')
    head.append(".text")
    txt = "\n".join(head) + "\n" + g.text()
    txt += '.section .rodata,"a"\n'
    for name, nv, _ in ks:
        txt += ".p2align 6\n" + kernel_desc(name, nv)
    open(out, "w").write(txt)
    for name, nv, l in ks: print(name, "vgpr", nv, l)

if __name__ == "__main__":
    main(sys.argv[1] if len(sys.argv) > 1 else f"cdna_kernels/{NAME}.s")
```

```python
import sys, struct

NAME = "sequential_preLN__linear_attn_block__geglu_ffn__prompt"
MB = 1 << 20
WS_XN = 0 * MB
WS_PQ = 8 * MB
WS_KVP = 12 * MB
WS_ZP = 14 * MB
WS_O = 16 * MB
WS_H = 20 * MB
WS_ST = 26 * MB
WS_S = 27 * MB
WS_ACT = 32 * MB
WS_BYTES = 48 * MB
OOB = 0x7f000000
import os
HSTR = int(os.environ.get('GHSTR', '65536'))

def f2u(x):
    return struct.unpack("<I", struct.pack("<f", x))[0]

class G:
    def __init__(self):
        self.lines = []
        self.uid = 0
    def e(self, s):
        self.lines.append("    " + s)
    def label(self, s):
        self.lines.append(s + ":")
    def raw(self, s):
        self.lines.append(s)
    def newlabel(self, p="L"):
        self.uid += 1
        return f"{p}_{self.uid}"
    def text(self):
        return "\n".join(self.lines) + "\n"

def vr(b, n=1):
    return f"v{b}" if n == 1 else f"v[{b}:{b+n-1}]"
def sr(b, n=1):
    return f"s{b}" if n == 1 else f"s[{b}:{b+n-1}]"

class Alloc:
    def __init__(self, start=0, limit=256):
        self.n = start; self.limit = limit
    def get(self, cnt=1, align=1):
        self.n = (self.n + align - 1) // align * align
        b = self.n; self.n += cnt
        assert self.n <= self.limit, f"out of regs {self.n}"
        return b

def kernel_begin(g, name):
    g.raw(f".globl {name}")
    g.raw(".p2align 8")
    g.raw(f".type {name},@function")
    g.label(name)

def kernel_desc(name, nv, ns=96):
    nv = max(nv, 8)
    acc = (nv + 3) // 4 * 4
    return f""".amdhsa_kernel {name}
  .amdhsa_next_free_vgpr {nv}
  .amdhsa_next_free_sgpr {ns}
  .amdhsa_accum_offset {acc}
  .amdhsa_group_segment_fixed_size 0
  .amdhsa_kernarg_size 80
  .amdhsa_user_sgpr_count 2
  .amdhsa_user_sgpr_kernarg_segment_ptr 1
  .amdhsa_system_sgpr_workgroup_id_x 1
.end_amdhsa_kernel
"""

import os
NOPF = os.environ.get("GNOPF", "")
PF = "0" not in NOPF; PF1 = "1" not in NOPF; PF4 = "4" not in NOPF
PFS = int(os.environ.get("GPFS", "6"))
CFG = dict(k1=(2, 16, 2), k3=(2, 16, 2), k4=(2, 16, 2), k5=(2, 56, 2))
for kv in os.environ.get("GCFG", "").split(";"):
    if kv:
        k_, v_ = kv.split("="); CFG[k_] = tuple(int(x) for x in v_.split(","))
STAMP = os.environ.get("GSTAMP", "") != ""
def stamp(g, i):
    if not STAMP: return
    g.e(f"s_memtime s[{60+2*i}:{61+2*i}]")
    g.e("s_waitcnt lgkmcnt(0)")
def stamp_flush(g, n):
    if not STAMP: return
    L = g.newlabel("Lst")
    g.e("s_cmp_lg_u32 s2, 5")
    g.e(f"s_cbranch_scc1 {L}")
    g.e("s_mov_b64 exec, -1")
    g.e("s_load_dwordx2 s[80:81], s[0:1], 64")
    g.e("s_waitcnt lgkmcnt(0)")
    g.e("s_mov_b32 s82, 256")
    g.e("s_mov_b32 s83, 0x00020000")
    g.e("s_lshl_b32 s84, s3, 5")
    g.e("v_mov_b32 v0, s84")
    for i in range(n):
        g.e(f"s_sub_u32 s85, s{60+2*i}, s60")
        g.e("v_mov_b32 v1, s85")
        g.e(f"buffer_store_dword v1, v0, s[80:83], 0 offen offset:{4*i}")
    g.label(L)

def make_srd(g, d, base, nbytes, add=0):
    if add:
        g.e(f"s_add_u32 s{d}, s{base}, {add}")
        g.e(f"s_addc_u32 s{d+1}, s{base+1}, 0")
    else:
        g.e(f"s_mov_b32 s{d}, s{base}")
        g.e(f"s_mov_b32 s{d+1}, s{base+1}")
    g.e(f"s_mov_b32 s{d+2}, {nbytes}")
    g.e(f"s_mov_b32 s{d+3}, 0x00020000")

import os
DBG = set(os.environ.get("GDBG", "").split(","))
class Stream:
    def __init__(self):
        self.items = []
        self.vm = []; self.lg = []
        self.vm_done = 0; self.lg_done = 0
    def i(self, text):
        self.items.append(('i', text))
    def vmop(self, text, oid):
        self.items.append(('i', text)); self.vm.append(oid)
    def lgop(self, text, oid):
        self.items.append(('i', text)); self.lg.append(oid)
    def need(self, kind, oids):
        lst = self.vm if kind == 'vm' else self.lg
        done = self.vm_done if kind == 'vm' else self.lg_done
        idx = max(lst.index(o) for o in oids)
        if idx < done:
            self.items.append(['w', kind, None]); return
        n = len(lst) - 1 - idx
        cap = 63 if kind == 'vm' else 15
        n = min(n, cap)
        self.items.append(['w', kind, n])
        if kind == 'vm': self.vm_done = len(lst) - n
        else: self.lg_done = len(lst) - n

def gemm_core(g, c):
    MF = c.get('MF', 32)
    SPT = 4 if MF == 32 else 2
    AW = 16 if MF == 32 else 4
    op = "v_mfma_f32_32x32x16_bf16" if MF == 32 else "v_mfma_f32_16x16x32_bf16"
    RB, CB, NB, NA, NS, KT = c['RB'], c['CB'], c['NB'], c['NA'], c['NS'], c['KT']
    acc = c['acc']; araw = c['araw']; bfr = c['bfr']
    vA = c['vA']; vBl = c['vBl']; vBrd = c['vBrd']
    srdA = c['srdA']; srdB = c['srdB']
    sAe, sBe = c['sregs']
    stage = c['stage']; tileB = c['tileB']
    dma = c['dma']
    sWave = c['sWave']
    swap = c['swap']; b_imm = c['b_imm']
    bar_off = c.get('bar_off', 1)
    PB = NS - 1
    P = c.get('P', 2)
    rate = c.get('rate', 2)
    FT = SPT * CB
    assert NB <= FT
    cur = {'A': None, 'B': None}
    bq = []

    def a_reg(t, kk, rb): return araw[((t % NA) * SPT + kk) * RB + rb]
    def b_reg(f): return bfr[f % NB]
    def a_const(st, tt, kk, rb):
        if tt >= KT: return
        if cur['A'] != tt:
            st.i(f"s_mov_b32 s{sAe}, {tt*4096}"); cur['A'] = tt
        st.vmop(f"buffer_load_dwordx4 {vr(a_reg(tt,kk,rb),4)}, v{vA[rb]}, {sr(srdA,4)}, s{sAe} offen offset:{kk*(4096//SPT)}", ('A', tt, kk, rb))
    def d_const(st, tt, i):
        if tt >= KT: return
        vo, lc, half = dma[i]
        if cur['B'] != tt:
            st.i(f"s_mov_b32 s{sBe}, {tt*tileB}"); cur['B'] = tt
        st.i(f"s_add_u32 m0, s{sWave}, {(tt % NS) * stage + lc}")
        if half: st.i("s_mov_b32 exec_hi, 0")
        else: st.i("s_nop 0")
        st.vmop(f"buffer_load_dwordx4 v{vo}, {sr(srdB,4)}, s{sBe} offen lds", ('D', tt, i))
        if half: st.i("s_mov_b32 exec_hi, -1")
    def issue_reads(st, f):
        if f >= FT * KT: return
        s_, cb = divmod(f, CB)
        for q in range(2):
            st.lgop(f"ds_read_b64_tr_b16 {vr(b_reg(f)+2*q,2)}, v{vBrd} offset:{b_imm(s_ % SPT, cb, q)}", ('R', f, q))

    def gen_tile(st, t):
        for fn in c.get('at_tile', {}).get(t, []): fn(st, bq)
        fbar = (t + 1) * FT - NB + bar_off
        deferred = []
        for kk in range(SPT):
            s = SPT * t + kk
            if s >= 1:
                pt, pk = divmod(s - 1, SPT)
                for rb in range(RB):
                    bq.append(lambda tgt=pt + NA, pk=pk, rb=rb: a_const(st, tgt, pk, rb))
            for cb in range(CB):
                f = s * CB + cb
                st.need('lg', [('R', f, 0), ('R', f, 1)])
                if cb == 0:
                    st.need('vm', [('A', t, kk, rb) for rb in range(RB)])
                for rb in range(RB):
                    a = a_reg(t, kk, rb); b = b_reg(f)
                    x, y = (b, a) if swap[cb] else (a, b)
                    st.i(f"{op} {vr(acc[rb][cb],AW)}, {vr(x,4)}, {vr(y,4)}, {vr(acc[rb][cb],AW) if s else 0}")
                if f == fbar and t < KT - 1:
                    st.need('vm', [('D', t + 1, i) for i in range(len(dma))])
                    st.i("s_barrier")
                    st.i(f"v_add_u32 v{vBrd}, {((t + 1) % NS) * stage}, v{vBl}")
                    for i in range(len(dma)):
                        bq.append(lambda tt=t + PB, i=i: d_const(st, tt, i))
                    for df in deferred: issue_reads(st, df)
                    deferred = []
                if f + NB >= (t + 1) * FT and f < fbar: deferred.append(f + NB)
                else: issue_reads(st, f + NB)
                for _ in range(rate):
                    if bq: bq.pop(0)()
                if c.get('slot_hook'): c['slot_hook'](st, t, kk, cb)

    st = Stream()
    for tt in range(P):
        for i in range(len(dma)): d_const(st, tt, i)
        for kk in range(SPT):
            for rb in range(RB): a_const(st, tt, kk, rb)
    for tt in range(P, max(PB, NA)):
        if tt < PB:
            for i in range(len(dma)): bq.append(lambda tt=tt, i=i: d_const(st, tt, i))
        if tt < NA:
            for kk in range(SPT):
                for rb in range(RB): bq.append(lambda tt=tt, kk=kk, rb=rb: a_const(st, tt, kk, rb))
    if c.get('hook_pre'): c['hook_pre'](st)
    if STAMP: st.i("s_memtime s[72:73]"); st.i("s_waitcnt lgkmcnt(0)")
    st.need('vm', [('D', 0, i) for i in range(len(dma))])
    st.i("s_barrier")
    if STAMP: st.i("s_memtime s[74:75]"); st.i("s_waitcnt lgkmcnt(0)")
    st.i(f"v_mov_b32 v{vBrd}, v{vBl}")
    for f in range(NB): issue_reads(st, f)
    n_pro = len(st.items)
    for t in range(KT): gen_tile(st, t)
    while bq: bq.pop(0)()
    dbg = DBG if c.get('name') in DBG else set()
    def out(items, loop=False):
        for it in items:
            if it[0] == 'i':
                t_ = it[1]
                if loop:
                    if 'nodma' in dbg and t_.endswith('lds'): continue
                    if 'noaload' in dbg and t_.startswith('buffer_load') and not t_.endswith('lds'): continue
                    if 'nobar' in dbg and t_ == 's_barrier': continue
                    if 'nomfma' in dbg and t_.startswith('v_mfma'): continue
                    if 'noread' in dbg and t_.startswith('ds_read'): continue
                g.e(it[1])
            elif it[2] is not None:
                g.e(f"s_waitcnt {'vmcnt' if it[1]=='vm' else 'lgkmcnt'}({it[2]})")
    c['nbar'] = sum(1 for it in st.items if it[0] == 'i' and it[1] == 's_barrier')
    out(st.items[:n_pro])
    stamp(g, 1)
    out(st.items[n_pro:], True)
    stamp(g, 2)
    g.e("s_waitcnt lgkmcnt(0)" if c.get('no_final_vm') else "s_waitcnt vmcnt(0) lgkmcnt(0)")
    g.e("s_nop 15")
    stamp(g, 3)

LOG2E = 1.4426950408889634

def common_entry(g, nwg, vLane, sWv, done):
    g.e(f"s_cmp_ge_u32 s2, {nwg}")
    g.e(f"s_cbranch_scc1 {done}")
    g.e(f"v_and_b32 v{vLane}, 63, v0")
    g.e(f"v_lshrrev_b32 v1, 6, v0")
    g.e("s_nop 0")
    g.e(f"v_readfirstlane_b32 s{sWv}, v1")
    stamp(g, 0)

def emit_vBl_std(g, vBl, vLane, t):
    g.e(f"v_lshrrev_b32 v{vBl}, 5, v{vLane}")
    g.e(f"v_lshlrev_b32 v{vBl}, 8, v{vBl}")
    g.e(f"v_bfe_u32 v{t}, v{vLane}, 2, 2")
    g.e(f"v_lshl_add_u32 v{vBl}, v{t}, 6, v{vBl}")
    g.e(f"v_bfe_u32 v{t}, v{vLane}, 4, 1")
    g.e(f"v_lshl_add_u32 v{vBl}, v{t}, 5, v{vBl}")
    g.e(f"v_and_b32 v{t}, 3, v{vLane}")
    g.e(f"v_lshl_add_u32 v{vBl}, v{t}, 3, v{vBl}")

def emit_dma_lane_std(g, vD, vLane, t, ldb, sT):
    g.e(f"v_bfe_u32 v{t}, v{vLane}, 2, 3")
    g.e(f"s_mov_b32 s{sT}, {ldb}")
    g.e(f"v_mul_lo_u32 v{vD}, v{t}, s{sT}")
    g.e(f"v_lshrrev_b32 v{t}, 5, v{vLane}")
    g.e(f"v_lshl_add_u32 v{vD}, v{t}, 6, v{vD}")
    g.e(f"v_and_b32 v{t}, 3, v{vLane}")
    g.e(f"v_lshl_add_u32 v{vD}, v{t}, 4, v{vD}")

def zero_regs(g, base, n):
    for i in range(n): g.e(f"v_mov_b32 v{base+i}, 0")

def k0(g):
    name = "k0_ln_kernel"
    kernel_begin(g, name)
    done = "k0_done"
    sWv = 3
    X0 = int(os.environ.get("GX0", "0"))
    common_entry(g, 256 + X0, 2, sWv, done)
    if X0:
        g.e("s_cmp_ge_u32 s2, 256")
        g.e("s_cbranch_scc1 k0_pf")
    g.e("s_load_dwordx4 s[4:7], s[0:1], 0")
    g.e("s_load_dwordx2 s[28:29], s[0:1], 72")
    g.e("v_and_b32 v3, 7, v2")
    g.e("v_lshrrev_b32 v4, 3, v2")
    g.e("s_lshl_b32 s16, s2, 3")
    g.e("v_add_u32 v5, s16, v3")
    g.e("v_lshlrev_b32 v5, 11, v5")
    g.e("s_lshl_b32 s17, s3, 4")
    g.e("v_add_u32 v6, s17, v4")
    g.e("v_lshl_add_u32 v5, v6, 5, v5")
    g.e("s_waitcnt lgkmcnt(0)")
    make_srd(g, 8, 4, 4 * MB)
    make_srd(g, 12, 28, 4 * MB, WS_XN)
    g.e("buffer_load_dwordx4 v[8:11], v5, s[8:11], 0 offen")
    g.e("buffer_load_dwordx4 v[12:15], v5, s[8:11], 0 offen offset:16")
    g.e("buffer_load_dwordx4 v[16:19], v5, s[8:11], 0 offen offset:256")
    g.e("buffer_load_dwordx4 v[20:23], v5, s[8:11], 0 offen offset:272")
    if PF:
        make_srd(g, 24, 6, 1024 * 6144)
        g.e(f"s_lshl_b32 s22, s2, {PFS+8}")
        g.e(f"v_lshl_add_u32 v28, v0, {PFS}, s22")
        g.e(f"s_mov_b32 s23, {4*MB}")
        g.e("buffer_load_dword v29, v28, s[24:27], 0 offen")
        g.e(f"buffer_load_dword v30, v28, s[24:27], s23 offen" if PFS == 6 else "s_nop 0")
    g.e("s_lshr_b32 s18, s2, 2")
    g.e("s_lshl_b32 s18, s18, 16")
    g.e("s_and_b32 s19, s2, 3")
    g.e("s_lshl_b32 s19, s19, 7")
    g.e("s_add_u32 s18, s18, s19")
    g.e("v_lshlrev_b32 v7, 10, v6")
    g.e("v_lshl_add_u32 v7, v3, 4, v7")
    g.e("v_add_u32 v7, s18, v7")
    g.e("v_mov_b32 v24, 0")
    g.e("v_mov_b32 v25, 0")
    g.e(f"s_waitcnt vmcnt({(2 if PFS == 6 else 1) if PF else 0})")
    for d in range(16):
        g.e(f"v_lshlrev_b32 v{32+2*d}, 16, v{8+d}")
        g.e(f"v_and_b32 v{33+2*d}, 0xffff0000, v{8+d}")
    for i in range(32):
        g.e(f"v_add_f32 v24, v24, v{32+i}")
        g.e(f"v_fma_f32 v25, v{32+i}, v{32+i}, v25")
    g.e("s_nop 1")
    g.e("v_add_f32_dpp v24, v24, v24 row_ror:8 row_mask:0xf bank_mask:0xf")
    g.e("v_add_f32_dpp v25, v25, v25 row_ror:8 row_mask:0xf bank_mask:0xf")
    for op in ("v_permlane16_swap_b32", "v_permlane32_swap_b32"):
        g.e("v_mov_b32 v26, v24")
        g.e("v_mov_b32 v27, v25")
        g.e("s_nop 1")
        g.e(f"{op} v24, v26")
        g.e(f"{op} v25, v27")
        g.e("s_nop 1")
        g.e("v_add_f32 v24, v24, v26")
        g.e("v_add_f32 v25, v25, v27")
    g.e("s_lshl_b32 s20, s3, 6")
    g.e("v_lshlrev_b32 v26, 3, v3")
    g.e("v_add_u32 v27, s20, v26")
    g.e("ds_write_b64 v27, v[24:25]")
    g.e("s_waitcnt lgkmcnt(0)")
    g.e("s_barrier")
    g.e("ds_read_b64 v[8:9], v26")
    g.e("ds_read_b64 v[10:11], v26 offset:64")
    g.e("ds_read_b64 v[12:13], v26 offset:128")
    g.e("ds_read_b64 v[14:15], v26 offset:192")
    g.e("s_waitcnt lgkmcnt(0)")
    g.e("v_add_f32 v8, v8, v10")
    g.e("v_add_f32 v9, v9, v11")
    g.e("v_add_f32 v12, v12, v14")
    g.e("v_add_f32 v13, v13, v15")
    g.e("v_add_f32 v8, v8, v12")
    g.e("v_add_f32 v9, v9, v13")
    g.e(f"v_mul_f32 v8, 0x{f2u(1/1024):08x}, v8")
    g.e(f"v_mul_f32 v9, 0x{f2u(1/1024):08x}, v9")
    g.e("v_fma_f32 v9, -v8, v8, v9")
    g.e("v_max_f32 v9, 0, v9")
    g.e(f"v_add_f32 v9, 0x{f2u(1e-5):08x}, v9")
    g.e("v_rsq_f32 v9, v9")
    g.e("s_nop 0")
    g.e("v_mul_f32 v8, v8, v9")
    for i in range(32):
        g.e(f"v_fma_f32 v{32+i}, v{32+i}, v9, -v8")
    for grp in range(2):
        b = 32 + 16 * grp; o = 8 + 8 * grp
        for k, e in enumerate((0, 2, 8, 10, 4, 6, 12, 14)):
            g.e(f"v_cvt_pk_bf16_f32 v{o+k}, v{b+e}, v{b+e+1}")
    g.e("s_mov_b32 s21, 8192")
    g.e("buffer_store_dwordx4 v[8:11], v7, s[12:15], 0 offen")
    g.e("buffer_store_dwordx4 v[12:15], v7, s[12:15], 0 offen offset:512")
    g.e("buffer_store_dwordx4 v[16:19], v7, s[12:15], s21 offen")
    g.e("buffer_store_dwordx4 v[20:23], v7, s[12:15], s21 offen offset:512")
    g.e("s_waitcnt vmcnt(0)")
    if STAMP:
        g.label(done + "_x")
        stamp(g, 4)
        g.e("s_waitcnt vmcnt(0)")
        stamp(g, 5)
        stamp_flush(g, 8)
    g.label(done)
    g.e("s_endpgm")
    if X0:
        g.label("k0_pf")
        g.e("s_load_dwordx4 s[8:11], s[0:1], 32")
        g.e("s_sub_u32 s16, s2, 256")
        per = 7168 * 1024 // X0
        g.e(f"s_mul_i32 s16, s16, {per}")
        g.e("v_lshl_add_u32 v4, v0, 6, s16")
        g.e("s_waitcnt lgkmcnt(0)")
        make_srd(g, 12, 8, 1024 * 7168)
        make_srd(g, 20, 10, 1024 * 7168)
        for i in range(-(-per // 16384)):
            g.e(f"s_mov_b32 s17, {i*16384}")
            g.e("buffer_load_dword v5, v4, s[12:15], s17 offen")
            g.e("buffer_load_dword v6, v4, s[20:23], s17 offen")
        g.e("s_waitcnt vmcnt(0)")
        g.e("s_endpgm")
    return name, 64, (256 + X0, 256, 256)

def emit_phi(g, r, t):
    g.e(f"v_mul_f32 v{t}, 0x{f2u(LOG2E):08x}, v{r}")
    g.e(f"v_min_f32 v{t}, 0, v{t}")
    g.e(f"v_exp_f32 v{t}, v{t}")
    g.e(f"v_add_f32 v{r}, 0x{f2u(1e-6):08x}, v{r}")
    g.e(f"v_max_f32 v{r}, 0x{f2u(1e-6):08x}, v{r}")
    g.e(f"v_add_f32 v{r}, v{r}, v{t}")

def k1(g, NA=4, NS=5):
    name = "k1_qkv_kernel"
    kernel_begin(g, name)
    done = "k1_done"
    va = Alloc(4)
    vLane = 2; vT = 3
    sWv = 3
    common_entry(g, 256, vLane, sWv, done)
    g.e("s_load_dwordx2 s[4:5], s[0:1], 8")
    g.e("s_load_dwordx2 s[6:7], s[0:1], 72")
    if PF1:
        g.e(f"s_cmp_eq_u32 s{sWv}, 4")
        g.e("s_cbranch_scc1 k1_pf")
    sMt, sJ = 20, 21
    g.e("s_and_b32 s16, s2, 7")
    g.e("s_lshr_b32 s17, s2, 3")
    g.e("s_and_b32 s18, s16, 1")
    g.e("s_lshl_b32 s18, s18, 3")
    g.e("s_and_b32 s19, s17, 7")
    g.e(f"s_add_u32 s{sMt}, s18, s19")
    g.e("s_lshr_b32 s18, s16, 1")
    g.e("s_lshl_b32 s18, s18, 2")
    g.e("s_lshr_b32 s19, s17, 3")
    g.e(f"s_add_u32 s{sJ}, s18, s19")
    RB, CB, D = 1, 6, 1
    acc = [[va.get(16, 4) for cb in range(CB)]]
    araw = [va.get(4, 4) for _ in range(NA * 4 * RB)]
    bfr = [va.get(4, 4) for _ in range(D * CB)]
    vA = [va.get()]; vBl = va.get(); vBrd = va.get()
    vD = [va.get() for _ in range(6)]
    sRbg = 22
    g.e(f"s_lshl_b32 s{sRbg}, s{sMt}, 2")
    g.e(f"s_add_u32 s{sRbg}, s{sRbg}, s{sWv}")
    g.e(f"s_lshl_b32 s16, s{sRbg}, 16")
    g.e(f"v_lshlrev_b32 v{vA[0]}, 4, v{vLane}")
    g.e(f"v_add_u32 v{vA[0]}, s16, v{vA[0]}")
    emit_vBl_std(g, vBl, vLane, vT)
    emit_dma_lane_std(g, vD[0], vLane, vT, 6144, 16)
    g.e(f"s_mul_i32 s16, s{sWv}, {16*6144}")
    g.e(f"s_lshl_b32 s17, s{sJ}, 7")
    g.e("s_add_u32 s16, s16, s17")
    g.e(f"v_add_u32 v{vD[0]}, s16, v{vD[0]}")
    dma = []
    for kbs in range(2):
        for seg in range(3):
            i = kbs * 3 + seg
            if i: g.e(f"v_add_u32 v{vD[i]}, {kbs*8*6144 + seg*2048}, v{vD[0]}")
            dma.append((vD[i], (kbs * 3 + seg) * 1024, False))
    sWave = 23
    g.e(f"s_mul_i32 s{sWave}, s{sWv}, 6144")
    g.e("s_waitcnt lgkmcnt(0)")
    make_srd(g, 8, 6, 4 * MB, WS_XN)
    make_srd(g, 12, 4, 1024 * 6144)
    pfc = {}
    c = dict(pfc, P=CFG['k1'][0], R=CFG['k1'][1], rate=CFG['k1'][2], name='k1', RB=RB, CB=CB, NB=D*CB, NA=NA, NS=NS, KT=16, acc=acc, araw=araw, bfr=bfr, vA=vA, vBl=vBl, vBrd=vBrd,
             srdA=8, srdB=12, sregs=(24, 25), stage=24576, tileB=64 * 6144,
             dma=dma, sWave=sWave, swap=[1, 1, 0, 0, 0, 0],
             b_imm=lambda kk, cb, q: ((2 * kk + q) * 3 + (cb >> 1)) * 1024 + (cb & 1) * 512)
    gemm_core(g, c)
    make_srd(g, 36, 6, 4 * MB, WS_PQ)
    make_srd(g, 40, 6, 2 * MB, WS_KVP)
    make_srd(g, 44, 6, 64 * 1024, WS_ZP)
    ep = Alloc(araw[0])
    t0 = ep.get(4)
    for cb in range(4):
        for i in range(16):
            emit_phi(g, acc[0][cb] + i, t0 + (i & 3))
    pk = [ep.get(8, 4) for _ in range(6)]
    for cb in range(6):
        for i in range(8):
            g.e(f"v_cvt_pk_bf16_f32 v{pk[cb]+i}, v{acc[0][cb]+2*i}, v{acc[0][cb]+2*i+1}")
    g.e(f"s_lshl_b32 s16, s{sJ}, 12")
    for cb in range(2):
        for s in range(2):
            g.e(f"buffer_store_dwordx4 {vr(pk[cb]+4*s,4)}, v{vA[0]}, s[36:39], s16 offen offset:{(2*cb+s)*1024}")
    ones = ep.get(4, 4)
    for i in range(4): g.e(f"v_mov_b32 v{ones+i}, 0x3f803f80")
    kvz = [acc[0][0], acc[0][1], acc[0][2], acc[0][3]]
    zero_regs(g, kvz[0], 64)
    g.e("s_nop 1")
    for hh in range(2):
        for s in range(2):
            g.e(f"v_mfma_f32_32x32x16_bf16 {vr(kvz[hh],16)}, {vr(pk[2+hh]+4*s,4)}, {vr(pk[4+hh]+4*s,4)}, {vr(kvz[hh],16)}")
            g.e(f"v_mfma_f32_32x32x16_bf16 {vr(kvz[2+hh],16)}, {vr(pk[2+hh]+4*s,4)}, {vr(ones,4)}, {vr(kvz[2+hh],16)}")
    g.e("s_barrier")
    g.e("s_nop 15")
    vL = ep.get(); vL2 = ep.get()
    g.e(f"v_lshlrev_b32 v{vL}, 4, v{vLane}")
    g.e(f"s_lshl_b32 s16, s{sWv}, 14")
    g.e(f"v_add_u32 v{vL2}, s16, v{vL}")
    for it in range(4):
        for q in range(4):
            g.e(f"ds_write_b128 v{vL2}, {vr(kvz[it]+4*q,4)} offset:{it*4096+q*1024}")
    g.e("s_waitcnt lgkmcnt(0)")
    g.e("s_barrier")
    g.e(f"s_lshl_b32 s16, s{sWv}, 12")
    g.e(f"v_add_u32 v{vL2}, s16, v{vL}")
    for w in range(4):
        for q in range(4):
            g.e(f"ds_read_b128 {vr(kvz[w]+4*q,4)}, v{vL2} offset:{w*16384+q*1024}")
    g.e("s_waitcnt lgkmcnt(0)")
    for i in range(16):
        g.e(f"v_add_f32 v{kvz[0]+i}, v{kvz[0]+i}, v{kvz[1]+i}")
        g.e(f"v_add_f32 v{kvz[2]+i}, v{kvz[2]+i}, v{kvz[3]+i}")
        g.e(f"v_add_f32 v{kvz[0]+i}, v{kvz[0]+i}, v{kvz[2]+i}")
    g.e(f"s_and_b32 s16, s{sWv}, 1")
    g.e(f"s_lshl_b32 s17, s{sJ}, 1")
    g.e("s_add_u32 s16, s16, s17")
    g.e(f"s_lshl_b32 s17, s{sMt}, 5")
    g.e("s_add_u32 s16, s16, s17")
    g.e(f"s_cmp_ge_u32 s{sWv}, 2")
    g.e("s_cbranch_scc1 k1_z")
    g.e("s_lshl_b32 s16, s16, 12")
    for q in range(4):
        g.e(f"buffer_store_dwordx4 {vr(kvz[0]+4*q,4)}, v{vL}, s[40:43], s16 offen offset:{q*1024}")
    g.e(f"s_branch {done}" + ("_x" if STAMP else ""))
    g.label("k1_z")
    g.e("s_lshl_b32 s16, s16, 7")
    g.e(f"v_lshrrev_b32 v{vL}, 5, v{vLane}")
    g.e(f"v_lshlrev_b32 v{vL}, 6, v{vL}")
    g.e("s_mov_b32 exec_lo, 1")
    g.e("s_mov_b32 exec_hi, 1")
    for q in range(4):
        g.e(f"buffer_store_dwordx4 {vr(kvz[0]+4*q,4)}, v{vL}, s[44:47], s16 offen offset:{q*16}")
    if STAMP:
        g.label(done + "_x")
        stamp(g, 4)
        g.e("s_waitcnt vmcnt(0)")
        stamp(g, 5)
        stamp_flush(g, 8)
    g.label(done)
    g.e("s_endpgm")
    if PF1:
        g.label("k1_pf")
        g.e("s_load_dwordx2 s[48:49], s[0:1], 16")
        g.e("s_load_dwordx4 s[52:55], s[0:1], 32")
        g.e("s_load_dwordx2 s[56:57], s[0:1], 48")
        g.e(f"s_lshl_b32 s16, s2, {PFS+6}")
        g.e(f"v_lshl_add_u32 v4, v{vLane}, {PFS}, s16")
        g.e("s_waitcnt lgkmcnt(0)")
        make_srd(g, 8, 48, 2 * MB)
        make_srd(g, 12, 52, 1024 * 7168)
        make_srd(g, 16, 54, 1024 * 7168)
        make_srd(g, 24, 56, 3584 * 2048)
        SH = PFS
        step = 256 << (SH + 6)
        jobs = [(8, i) for i in range(-(-2 * MB // step))] + [(x, i) for i in range(-(-7168 * 1024 // step)) for x in (12, 16)]
        if os.environ.get("GWOONLY"): jobs = jobs[:2]
        start = CFG['k1'][3] if len(CFG['k1']) > 3 else 12
        per = CFG['k1'][4] if len(CFG['k1']) > 4 else 4
        for b in range(c['nbar'] + 2):
            g.e("s_barrier")
            if b < start: continue
            for _ in range(per):
                if jobs:
                    srd, i = jobs.pop(0)
                    g.e(f"s_mov_b32 s28, {i*step}")
                    g.e(f"buffer_load_dword v5, v4, {sr(srd,4)}, s28 offen")
        assert not jobs
        g.e("s_waitcnt vmcnt(0)")
        g.e("s_endpgm")
    return name, va.n, (256, 320 if PF1 else 256, NS * 24576)

def k2(g):
    name = "k2_att_kernel"
    kernel_begin(g, name)
    done = "k2_done"
    vLane = 2; sWv = 3
    common_entry(g, 256, vLane, sWv, done)
    g.e("s_load_dwordx2 s[6:7], s[0:1], 72")
    sH, sC = 20, 21
    g.e("s_and_b32 s16, s2, 7")
    g.e("s_lshl_b32 s16, s16, 2")
    g.e("s_bfe_u32 s17, s2, 0x20003")
    g.e(f"s_add_u32 s{sH}, s16, s17")
    g.e(f"s_lshr_b32 s{sC}, s2, 5")
    g.e(f"v_lshlrev_b32 v3, 4, v{vLane}")
    g.e(f"v_lshrrev_b32 v4, 5, v{vLane}")
    g.e("v_lshlrev_b32 v4, 6, v4")
    g.e("s_waitcnt lgkmcnt(0)")
    make_srd(g, 8, 6, 2 * MB, WS_KVP)
    make_srd(g, 12, 6, 64 * 1024, WS_ZP)
    make_srd(g, 24, 6, 4 * MB, WS_PQ)
    make_srd(g, 28, 6, 4 * MB, WS_O)
    g.e(f"s_lshl_b32 s16, s{sWv}, 7")
    g.e(f"s_add_u32 s16, s16, s{sH}")
    KV = 16; Z = 80
    for i in range(4):
        g.e(f"s_add_u32 s17, s16, {32*i}")
        g.e("s_lshl_b32 s18, s17, 12")
        g.e("s_lshl_b32 s19, s17, 7")
        for q in range(4):
            g.e(f"buffer_load_dwordx4 {vr(KV+16*i+4*q,4)}, v3, s[8:11], s18 offen offset:{q*1024}")
        for q in range(4):
            g.e(f"buffer_load_dwordx4 {vr(Z+16*i+4*q,4)}, v4, s[12:15], s19 offen offset:{q*16}")
    PQ = 144
    g.e(f"s_lshl_b32 s16, s{sC}, 3")
    g.e(f"s_lshl_b32 s17, s{sWv}, 1")
    g.e("s_add_u32 s16, s16, s17")
    g.e("s_lshl_b32 s16, s16, 16")
    g.e(f"s_lshl_b32 s17, s{sH}, 11")
    g.e("s_add_u32 s22, s16, s17")
    g.e("s_add_u32 s23, s22, 65536")
    for b in range(2):
        for s in range(2):
            g.e(f"buffer_load_dwordx4 {vr(PQ+8*b+4*s,4)}, v3, s[24:27], s{22+b} offen offset:{s*1024}")
    stamp(g, 6)
    g.e("s_waitcnt vmcnt(4)")
    stamp(g, 1)
    for base in (KV, Z):
        for i in range(16):
            g.e(f"v_add_f32 v{base+i}, v{base+i}, v{base+16+i}")
            g.e(f"v_add_f32 v{base+32+i}, v{base+32+i}, v{base+48+i}")
            g.e(f"v_add_f32 v{base+i}, v{base+i}, v{base+32+i}")
    g.e(f"s_lshl_b32 s16, s{sWv}, 13")
    g.e("v_add_u32 v5, s16, v3")
    for k, base in enumerate((KV, Z)):
        for q in range(4):
            g.e(f"ds_write_b128 v5, {vr(base+4*q,4)} offset:{k*4096+q*1024}")
    g.e("s_waitcnt lgkmcnt(0)")
    g.e("s_barrier")
    stamp(g, 2)
    for k, base in enumerate((KV, Z)):
        for w in range(4):
            for q in range(4):
                g.e(f"ds_read_b128 {vr(base+16*w+4*q,4)}, v3 offset:{w*8192+k*4096+q*1024}")
        g.e("s_waitcnt lgkmcnt(0)")
        for i in range(16):
            g.e(f"v_add_f32 v{base+i}, v{base+i}, v{base+16+i}")
            g.e(f"v_add_f32 v{base+32+i}, v{base+32+i}, v{base+48+i}")
            g.e(f"v_add_f32 v{base+i}, v{base+i}, v{base+32+i}")
    KF = 160; ZF = 168
    for i in range(8):
        g.e(f"v_cvt_pk_bf16_f32 v{KF+i}, v{KV+2*i}, v{KV+2*i+1}")
        g.e(f"v_cvt_pk_bf16_f32 v{ZF+i}, v{Z+2*i}, v{Z+2*i+1}")
    NUM = [16, 32]; DEN = [48, 64]
    zero_regs(g, 16, 64)
    g.e("s_waitcnt vmcnt(0)")
    stamp(g, 3)
    for b in range(2):
        for s in range(2):
            g.e(f"v_mfma_f32_32x32x16_bf16 {vr(NUM[b],16)}, {vr(KF+4*s,4)}, {vr(PQ+8*b+4*s,4)}, {vr(NUM[b],16)}")
            g.e(f"v_mfma_f32_32x32x16_bf16 {vr(DEN[b],16)}, {vr(ZF+4*s,4)}, {vr(PQ+8*b+4*s,4)}, {vr(DEN[b],16)}")
    g.e("s_nop 15")
    for b in range(2):
        g.e(f"v_add_f32 v{DEN[b]}, 0x{f2u(1e-6):08x}, v{DEN[b]}")
        g.e(f"v_rcp_f32 v{DEN[b]}, v{DEN[b]}")
    g.e("s_nop 0")
    OUT = 80
    for b in range(2):
        for i in range(16):
            g.e(f"v_mul_f32 v{NUM[b]+i}, v{NUM[b]+i}, v{DEN[b]}")
        for i in range(8):
            g.e(f"v_cvt_pk_bf16_f32 v{OUT+8*b+i}, v{NUM[b]+2*i}, v{NUM[b]+2*i+1}")
        for s in range(2):
            g.e(f"buffer_store_dwordx4 {vr(OUT+8*b+4*s,4)}, v3, s[28:31], s{22+b} offen offset:{s*1024}")
    if STAMP:
        g.label(done + "_x")
        stamp(g, 4)
        g.e("s_waitcnt vmcnt(0)")
        stamp(g, 5)
        stamp_flush(g, 8)
    g.label(done)
    g.e("s_endpgm")
    return name, 176, (256, 256, 32768)

def k35(g, which, NA=8, NS=8):
    is3 = which == 3
    name = "k3_wo_kernel" if is3 else "k5_down_kernel"
    KT = 16 if is3 else 56
    KS = KT * 4
    kernel_begin(g, name)
    done = f"k{which}_done"
    va = Alloc(4)
    vLane = 2; vT = 3; sWv = 3
    common_entry(g, 256, vLane, sWv, done)
    g.e(f"s_load_dwordx2 s[4:5], s[0:1], {16 if is3 else 48}")
    g.e("s_load_dwordx2 s[6:7], s[0:1], 72")
    g.e(f"s_load_dwordx2 s[34:35], s[0:1], {0 if is3 else 56}")
    if is3: g.e("s_load_dwordx4 s[44:47], s[0:1], 32")
    sMt, sNt = 20, 21
    g.e("s_and_b32 s16, s2, 7")
    g.e("s_lshr_b32 s17, s2, 3")
    g.e("s_lshr_b32 s18, s16, 1")
    g.e("s_lshl_b32 s18, s18, 2")
    g.e("s_and_b32 s19, s17, 3")
    g.e(f"s_add_u32 s{sMt}, s18, s19")
    g.e("s_and_b32 s18, s16, 1")
    g.e("s_lshl_b32 s18, s18, 3")
    g.e("s_lshr_b32 s19, s17, 2")
    g.e(f"s_add_u32 s{sNt}, s18, s19")
    RB, CB, D = 1, 2, 4
    acc = [[va.get(16, 4) for cb in range(CB)]]
    res = va.get(16, 4)
    araw = [va.get(4, 4) for _ in range(NA * 4 * RB)]
    bfr = [va.get(4, 4) for _ in range(D * CB)]
    vA = [va.get()]; vBl = va.get(); vBrd = va.get()
    vD = [va.get() for _ in range(2)]
    vH = va.get(); vR = va.get()
    sRbg = 22
    g.e(f"s_lshl_b32 s{sRbg}, s{sMt}, 2")
    g.e(f"s_add_u32 s{sRbg}, s{sRbg}, s{sWv}")
    g.e(f"s_mul_i32 s16, s{sRbg}, {KS*1024}")
    g.e(f"v_lshlrev_b32 v{vA[0]}, 4, v{vLane}")
    g.e(f"v_add_u32 v{vA[0]}, s16, v{vA[0]}")
    g.e(f"s_mul_i32 s16, s{sRbg}, {HSTR}")
    g.e(f"s_lshl_b32 s17, s{sNt}, 12")
    g.e("s_add_u32 s16, s16, s17")
    g.e(f"v_lshlrev_b32 v{vH}, 4, v{vLane}")
    g.e(f"v_add_u32 v{vH}, s16, v{vH}")
    g.e(f"v_and_b32 v{vR}, 31, v{vLane}")
    g.e(f"v_lshlrev_b32 v{vR}, 11, v{vR}")
    g.e(f"v_lshrrev_b32 v{vT}, 5, v{vLane}")
    g.e(f"v_lshl_add_u32 v{vR}, v{vT}, 4, v{vR}")
    g.e(f"s_lshl_b32 s16, s{sRbg}, 16")
    g.e(f"s_lshl_b32 s17, s{sNt}, 7")
    g.e("s_add_u32 s16, s16, s17")
    g.e(f"v_add_u32 v{vR}, s16, v{vR}")
    emit_vBl_std(g, vBl, vLane, vT)
    emit_dma_lane_std(g, vD[0], vLane, vT, 2048, 16)
    g.e(f"s_mul_i32 s16, s{sWv}, {16*2048}")
    g.e(f"s_lshl_b32 s17, s{sNt}, 7")
    g.e("s_add_u32 s16, s16, s17")
    g.e(f"v_add_u32 v{vD[0]}, s16, v{vD[0]}")
    g.e(f"v_add_u32 v{vD[1]}, {8*2048}, v{vD[0]}")
    dma = [(vD[0], 0, False), (vD[1], 1024, False)]
    sWave = 23
    g.e(f"s_lshl_b32 s{sWave}, s{sWv}, 11")
    g.e("s_waitcnt lgkmcnt(0)")
    if is3: make_srd(g, 8, 6, 4 * MB, WS_O)
    else: make_srd(g, 8, 6, 64 * 224 * 1024, WS_ACT)
    make_srd(g, 12, 4, KT * 64 * 2048)
    make_srd(g, 36, 6, 64 * HSTR, WS_H)
    make_srd(g, 40, 34, 4 * MB)
    def hook_pre(st):
        for j in range(4):
            if is3: st.vmop(f"buffer_load_dwordx4 {vr(res+4*j,4)}, v{vR}, s[40:43], 0 offen offset:{j*32}", ('X', j))
            else: st.vmop(f"buffer_load_dwordx4 {vr(res+4*j,4)}, v{vH}, s[36:39], 0 offen offset:{j*1024}", ('X', j))
    cf = CFG[f'k{which}']
    at = {}
    if is3:
        vC = va.get()
        spare = [va.get(4, 4) for _ in range(9)]
        cdst = spare + araw[0:4] + araw[4:7]
        T0 = cf[3] if len(cf) > 3 else 8
        ctile = [T0] * 9 + [9] * 4 + [10] * 3
        def cs_setup(st, bq):
            n0 = len(g.lines)
            g.e("s_sub_u32 s17, s2, 112")
            g.e("s_cmp_ge_u32 s2, 112")
            g.e("s_cselect_b32 s17, s17, s2")
            g.e("s_cselect_b32 s50, 1, 0")
            g.e("s_cselect_b32 s4, s46, s44")
            g.e("s_cselect_b32 s5, s47, s45")
            g.e("s_lshr_b32 s51, s17, 2")
            g.e("s_and_b32 s52, s2, 3")
            g.e(f"v_lshrrev_b32 v{vC}, 4, v{vLane}")
            g.e(f"v_mul_u32_u24 v{vC}, 7168, v{vC}")
            g.e(f"v_and_b32 v{vT}, 15, v{vLane}")
            g.e(f"v_lshl_add_u32 v{vC}, v{vT}, 4, v{vC}")
            g.e("s_lshl_b32 s19, s52, 2")
            g.e(f"s_add_u32 s19, s19, s{sWv}")
            g.e(f"s_mul_i32 s19, s19, {64*7168}")
            g.e("s_lshl_b32 s18, s51, 8")
            g.e("s_add_u32 s19, s19, s18")
            g.e("s_cmp_ge_u32 s2, 224")
            g.e(f"s_cselect_b32 s19, {OOB}, s19")
            g.e(f"v_add_u32 v{vC}, s19, v{vC}")
            make_srd(g, 56, 4, 1024 * 7168)
            for l in g.lines[n0:]: st.i(l.strip())
            del g.lines[n0:]
        at.setdefault(T0, []).append(cs_setup)
        for i in range(16):
            def ld(st, bq, i=i):
                def f():
                    st.i(f"s_mov_b32 s33, {i*4*7168}")
                    st.vmop(f"buffer_load_dwordx4 {vr(cdst[i],4)}, v{vC}, s[56:59], s33 offen", ('CS', i))
                bq.append(f)
            at.setdefault(ctile[i], []).append(ld)
    c = dict(P=cf[0], R=cf[1], rate=cf[2], hook_pre=hook_pre, at_tile=at, no_final_vm=is3, name=f'k{which}', RB=RB, CB=CB, NB=D*CB, NA=NA, NS=NS, KT=KT, acc=acc, araw=araw, bfr=bfr, vA=vA, vBl=vBl, vBrd=vBrd,
             srdA=8, srdB=12, sregs=(24, 25), stage=8192, tileB=64 * 2048,
             dma=dma, sWave=sWave, swap=[1, 1], bar_off=0,
             b_imm=lambda kk, cb, q: (2 * kk + q) * 1024 + cb * 512)
    gemm_core(g, c)
    ep = Alloc(araw[8])
    t = ep.get(4)
    if is3:
        for j in range(4):
            g.e(f"v_permlane32_swap_b32 v{res+4*j}, v{res+4*j+2}")
            g.e(f"v_permlane32_swap_b32 v{res+4*j+1}, v{res+4*j+3}")
        g.e("s_nop 1")
    a0 = acc[0][0]
    for d in range(16):
        g.e(f"v_lshlrev_b32 v{t}, 16, v{res+d}")
        g.e(f"v_and_b32 v{t+1}, 0xffff0000, v{res+d}")
        g.e(f"v_add_f32 v{a0+2*d}, v{a0+2*d}, v{t}")
        g.e(f"v_add_f32 v{a0+2*d+1}, v{a0+2*d+1}, v{t+1}")
    out = ep.get(16, 4)
    for d in range(16):
        g.e(f"v_cvt_pk_bf16_f32 v{out+d}, v{a0+2*d}, v{a0+2*d+1}")
    if is3:
        for j in range(4):
            g.e(f"buffer_store_dwordx4 {vr(out+4*j,4)}, v{vH}, s[36:39], 0 offen offset:{j*1024}")
        S = ep.get(2, 2); S2 = ep.get(2, 2)
        g.e(f"v_mov_b32 v{S}, 0")
        g.e(f"v_mov_b32 v{S+1}, 0")
        for d in range(16):
            g.e(f"v_lshlrev_b32 v{t}, 16, v{out+d}")
            g.e(f"v_and_b32 v{t+1}, 0xffff0000, v{out+d}")
            g.e(f"v_add_f32 v{S}, v{S}, v{t}")
            g.e(f"v_fma_f32 v{S+1}, v{t}, v{t}, v{S+1}")
            g.e(f"v_add_f32 v{S}, v{S}, v{t+1}")
            g.e(f"v_fma_f32 v{S+1}, v{t+1}, v{t+1}, v{S+1}")
        g.e(f"v_mov_b32 v{S2}, v{S}")
        g.e(f"v_mov_b32 v{S2+1}, v{S+1}")
        g.e("s_nop 1")
        g.e(f"v_permlane32_swap_b32 v{S}, v{S2}")
        g.e(f"v_permlane32_swap_b32 v{S+1}, v{S2+1}")
        g.e("s_nop 1")
        g.e(f"v_add_f32 v{S}, v{S}, v{S2}")
        g.e(f"v_add_f32 v{S+1}, v{S+1}, v{S2+1}")
        make_srd(g, 44, 6, 256 * 1024, WS_ST)
        g.e(f"v_and_b32 v{t}, 31, v{vLane}")
        g.e(f"v_lshlrev_b32 v{t}, 3, v{t}")
        g.e(f"s_lshl_b32 s16, s{sRbg}, 8")
        g.e(f"s_lshl_b32 s17, s{sNt}, 14")
        g.e("s_add_u32 s16, s16, s17")
        g.e("s_mov_b32 exec_hi, 0")
        g.e(f"buffer_store_dwordx2 {vr(S,2)}, v{t}, s[44:47], s16 offen")
        g.e("s_mov_b32 exec_hi, -1")
        idn = ep.get(4, 4); Dc = ep.get(4, 4); vW = ep.get(); R4 = ep.get(4)
        g.e(f"v_and_b32 v{t}, 15, v{vLane}")
        g.e(f"v_and_b32 v{t+1}, 1, v{vLane}")
        g.e(f"v_lshlrev_b32 v{t+1}, 4, v{t+1}")
        g.e(f"v_mov_b32 v{t+2}, 0x3f80")
        g.e(f"v_lshlrev_b32 v{t+1}, v{t+1}, v{t+2}")
        g.e(f"v_lshrrev_b32 v{t}, 1, v{t}")
        for j in range(4):
            g.e(f"v_cmp_eq_u32 vcc, {j}, v{t}")
            g.e(f"v_cndmask_b32 v{idn+j}, 0, v{t+1}, vcc")
        g.e(f"v_and_b32 v{vW}, 15, v{vLane}")
        g.e(f"v_lshlrev_b32 v{vW}, 5, v{vW}")
        g.e(f"v_bfe_u32 v{t}, v{vLane}, 4, 1")
        g.e(f"v_lshl_add_u32 v{vW}, v{t}, 4, v{vW}")
        g.e(f"s_lshl_b32 s16, s{sWv}, 9")
        g.e(f"s_add_u32 s16, s16, {NS*8192}")
        g.e(f"v_add_u32 v{vW}, s16, v{vW}")
        make_srd(g, 44, 6, 7168 * 16, WS_S)
        for i in range(16):
            g.e(f"s_waitcnt vmcnt({5 + 15 - i})")
            g.e(f"v_mfma_f32_16x16x32_bf16 {vr(Dc,4)}, {vr(idn,4)}, {vr(cdst[i],4)}, {vr(Dc,4) if i else 0}")
        g.e("s_nop 15")
        g.e("s_mov_b32 exec_hi, 0")
        g.e(f"ds_write_b128 v{vW}, {vr(Dc,4)}")
        g.e("s_mov_b32 exec_hi, -1")
        g.e("s_waitcnt lgkmcnt(0)")
        g.e("s_barrier")
        g.e(f"s_cmp_ge_u32 s{sWv}, 2")
        g.e(f"s_cbranch_scc1 {done}" + ("_x" if STAMP else ""))
        g.e(f"v_lshlrev_b32 v{t}, 2, v0")
        g.e(f"v_add_u32 v{t}, {NS*8192}, v{t}")
        for w in range(4): g.e(f"ds_read_b32 v{R4+w}, v{t} offset:{w*512}")
        g.e("s_mul_i32 s19, s50, 3584")
        g.e("s_lshl_b32 s18, s51, 7")
        g.e("s_add_u32 s19, s19, s18")
        g.e("s_lshl_b32 s19, s19, 4")
        g.e("s_lshl_b32 s18, s52, 2")
        g.e("s_add_u32 s19, s19, s18")
        g.e("s_cmp_ge_u32 s2, 224")
        g.e(f"s_cbranch_scc1 {done}" + ("_x" if STAMP else ""))
        g.e(f"v_lshlrev_b32 v{t}, 4, v0")
        g.e("s_waitcnt lgkmcnt(0)")
        g.e(f"v_add_f32 v{R4}, v{R4}, v{R4+1}")
        g.e(f"v_add_f32 v{R4+2}, v{R4+2}, v{R4+3}")
        g.e(f"v_add_f32 v{R4}, v{R4}, v{R4+2}")
        g.e(f"buffer_store_dword v{R4}, v{t}, s[44:47], s19 offen")
    else:
        g.e("s_nop 1")
        for j in range(4):
            g.e(f"v_permlane32_swap_b32 v{out+4*j}, v{out+4*j+2}")
            g.e(f"v_permlane32_swap_b32 v{out+4*j+1}, v{out+4*j+3}")
        g.e("s_nop 1")
        for j in range(4):
            g.e(f"buffer_store_dwordx4 {vr(out+4*j,4)}, v{vR}, s[40:43], 0 offen offset:{j*32}")
    if STAMP:
        g.label(done + "_x")
        stamp(g, 4)
        g.e("s_waitcnt vmcnt(0)")
        stamp(g, 5)
        stamp_flush(g, 8)
    g.label(done)
    g.e("s_endpgm")
    return name, va.n, (256, 256, NS * 8192 + (2048 if is3 else 0))

def k4(g, NA=2, NS=5):
    name = "k4_ffn_kernel"
    kernel_begin(g, name)
    done = "k4_done"
    va = Alloc(4)
    vLane = 2; vT = 3; sWv = 3
    UOFF = 14464; STAGE = 28800
    NA = CFG['k4'][3] if len(CFG['k4']) > 3 else NA
    common_entry(g, 256, vLane, sWv, done)
    g.e("s_load_dwordx4 s[36:39], s[0:1], 32")
    g.e("s_load_dwordx2 s[6:7], s[0:1], 72")
    if PF4: g.e("s_load_dwordx2 s[48:49], s[0:1], 48")
    sMt, sNt = 20, 21
    g.e("s_and_b32 s16, s2, 7")
    g.e("s_lshr_b32 s17, s2, 3")
    g.e("s_and_b32 s18, s16, 1")
    g.e("s_lshl_b32 s18, s18, 2")
    g.e("s_and_b32 s19, s17, 3")
    g.e(f"s_add_u32 s{sMt}, s18, s19")
    g.e("s_lshr_b32 s18, s16, 1")
    g.e("s_lshl_b32 s18, s18, 3")
    g.e("s_lshr_b32 s19, s17, 2")
    g.e(f"s_add_u32 s{sNt}, s18, s19")
    RB, CB, D = 1, 7, 1
    acc = [[va.get(16, 4) for cb in range(CB)]]
    araw = [va.get(4, 4) for _ in range(NA * 4 * RB)]
    bfr = [va.get(4, 4) for _ in range(D * CB)]
    st0 = va.get(16, 4)
    Sv4 = va.get(28, 4)
    tmp = [st0 + i for i in range(3)]
    vA = [va.get()]; vBl = va.get(); vBrd = va.get()
    vD = [va.get() for _ in range(4)]
    vC1 = va.get(); vC2 = va.get(); vI2 = va.get(); vS = va.get(); vSa = va.get()
    sRbg = 22
    g.e(f"s_lshl_b32 s{sRbg}, s{sMt}, 3")
    g.e(f"s_add_u32 s{sRbg}, s{sRbg}, s{sWv}")
    g.e(f"s_mul_i32 s16, s{sRbg}, {HSTR}")
    g.e(f"v_lshlrev_b32 v{vA[0]}, 4, v{vLane}")
    g.e(f"v_add_u32 v{vA[0]}, s16, v{vA[0]}")
    g.e(f"v_lshrrev_b32 v{vT}, 5, v{vLane}")
    g.e(f"v_bfe_u32 v{vBl}, v{vLane}, 2, 2")
    g.e(f"v_lshl_add_u32 v{vT}, v{vT}, 2, v{vBl}")
    g.e(f"v_mul_u32_u24 v{vBl}, 224, v{vT}")
    g.e(f"v_bfe_u32 v{vT}, v{vLane}, 4, 1")
    g.e(f"v_mul_u32_u24 v{vT}, {UOFF}, v{vT}")
    g.e(f"v_add_u32 v{vBl}, v{vBl}, v{vT}")
    g.e(f"v_and_b32 v{vT}, 3, v{vLane}")
    g.e(f"v_lshl_add_u32 v{vBl}, v{vT}, 3, v{vBl}")
    g.e(f"s_lshr_b32 s16, s{sWv}, 1")
    g.e(f"s_mul_i32 s17, s16, {16*7168}")
    g.e(f"s_mul_i32 s18, s{sNt}, 224")
    g.e("s_add_u32 s17, s17, s18")
    for i in range(4):
        g.e(f"v_add_u32 v{tmp[0]}, {64*i}, v{vLane}")
        g.e(f"v_mul_u32_u24 v{tmp[1]}, 4682, v{tmp[0]}")
        g.e(f"v_lshrrev_b32 v{tmp[1]}, 16, v{tmp[1]}")
        g.e(f"v_mul_u32_u24 v{tmp[2]}, 14, v{tmp[1]}")
        g.e(f"v_sub_u32 v{tmp[2]}, v{tmp[0]}, v{tmp[2]}")
        g.e(f"v_mul_u32_u24 v{tmp[1]}, 7168, v{tmp[1]}")
        g.e(f"v_lshl_add_u32 v{tmp[1]}, v{tmp[2]}, 4, v{tmp[1]}")
        g.e(f"v_add_u32 v{vD[i]}, s17, v{tmp[1]}")
    dma = [(vD[i], i * 1024, i == 3) for i in range(4)]
    sWave = 23
    g.e(f"s_mul_i32 s{sWave}, s16, 3584")
    g.e(f"s_and_b32 s18, s{sWv}, 1")
    g.e(f"s_mul_i32 s19, s18, {UOFF}")
    g.e(f"s_add_u32 s{sWave}, s{sWave}, s19")
    g.e("s_waitcnt lgkmcnt(0)")
    g.e("s_cmp_eq_u32 s18, 0")
    g.e("s_cselect_b32 s4, s36, s38")
    g.e("s_cselect_b32 s5, s37, s39")
    make_srd(g, 8, 6, 64 * HSTR, WS_H)
    make_srd(g, 12, 4, 1024 * 7168)
    at = {}
    def late_setup(st):
        n0 = len(g.lines)
        make_srd(g, 40, 6, 256 * 1024, WS_ST)
        make_srd(g, 44, 6, 64 * 224 * 1024, WS_ACT)
        g.e(f"v_and_b32 v{vS}, 31, v{vLane}")
        g.e(f"v_lshlrev_b32 v{vS}, 3, v{vS}")
        g.e(f"v_lshrrev_b32 v{vT}, 5, v{vLane}")
        g.e(f"v_lshl_add_u32 v{vS}, v{vT}, 14, v{vS}")
        g.e(f"s_lshl_b32 s16, s{sRbg}, 8")
        g.e(f"v_add_u32 v{vS}, s16, v{vS}")
        make_srd(g, 56, 6, 7168 * 16, WS_S)
        g.e(f"v_bfe_u32 v{vT}, v{vLane}, 4, 1")
        g.e(f"v_mul_u32_u24 v{vT}, {14336*4}, v{vT}")
        g.e(f"v_and_b32 v{vSa}, 15, v{vLane}")
        g.e(f"v_lshl_add_u32 v{vSa}, v{vSa}, 4, v{vT}")
        g.e(f"s_mul_i32 s16, s{sNt}, {448*4}")
        g.e(f"v_add_u32 v{vSa}, s16, v{vSa}")
        if PF4:
            make_srd(g, 52, 48, 3584 * 2048)
            g.e("s_lshl_b32 s16, s2, 12")
            g.e(f"v_lshl_add_u32 v{vP}, v0, 3, s16")
        for l in g.lines[n0:]: st.i(l.strip())
        del g.lines[n0:]
    if PF4:
        vP = va.get(); vJ = va.get()
        for it in range(8):
            def pf(st, bq, it=it):
                def f():
                    st.i(f"s_mov_b32 s33, {it*MB}")
                    st.vmop(f"buffer_load_dword v{vJ}, v{vP}, s[52:55], s33 offen", ('P', it))
                bq.append(f)
            at.setdefault(2 + it, []).append(pf)
    def ld_stats(st, bq):
        for j in range(8):
            def f(j=j):
                st.i(f"s_mov_b32 s33, {j*32768}")
                st.vmop(f"buffer_load_dwordx2 {vr(st0+2*j,2)}, v{vS}, s[40:43], s33 offen", ('S', j))
            bq.append(f)
        for cb in range(CB):
            bq.append(lambda cb=cb: st.vmop(f"buffer_load_dwordx4 {vr(Sv4+4*cb,4)}, v{vSa}, s[56:59], 0 offen offset:{cb*256}", ('C', cb)))
    at.setdefault(1, []).append(ld_stats)
    C1 = -2.0 * 0.7978845608028654 * LOG2E
    C2 = C1 * 0.044715
    def corr(st, bq):
        st.need('vm', [('S', j) for j in range(8)] + [('C', cb) for cb in range(CB)])
        for j in (8, 4, 2):
            for i in range(j):
                st.i(f"v_add_f32 v{st0+i}, v{st0+i}, v{st0+j+i}")
        st.i(f"v_mov_b32 v{st0+2}, v{st0}")
        st.i(f"v_mov_b32 v{st0+3}, v{st0+1}")
        st.i("s_nop 1")
        st.i(f"v_permlane32_swap_b32 v{st0}, v{st0+2}")
        st.i(f"v_permlane32_swap_b32 v{st0+1}, v{st0+3}")
        st.i("s_nop 1")
        st.i(f"v_add_f32 v{st0}, v{st0}, v{st0+2}")
        st.i(f"v_add_f32 v{st0+1}, v{st0+1}, v{st0+3}")
        st.i(f"v_mul_f32 v{st0}, 0x{f2u(-1/1024):08x}, v{st0}")
        st.i(f"v_mul_f32 v{st0+1}, 0x{f2u(1/1024):08x}, v{st0+1}")
        st.i(f"v_fma_f32 v{st0+1}, -v{st0}, v{st0}, v{st0+1}")
        st.i(f"v_max_f32 v{st0+1}, 0, v{st0+1}")
        st.i(f"v_add_f32 v{vI2}, 0x{f2u(1e-5):08x}, v{st0+1}")
        st.i(f"v_rsq_f32 v{st0+1}, v{vI2}")
        Bf = st0 + 4; Af = [st0 + 8, st0 + 12]
        st.i(f"v_cmp_gt_u32 vcc, 32, v{vLane}")
        st.i(f"v_cndmask_b32 v{st0}, 0, v{st0}, vcc")
        st.i(f"v_cvt_pk_bf16_f32 v{Bf+1}, v{st0}, 0")
        st.i(f"v_lshlrev_b32 v{st0+2}, 16, v{Bf+1}")
        st.i(f"v_sub_f32 v{st0+2}, v{st0}, v{st0+2}")
        st.i(f"v_cvt_pk_bf16_f32 v{Bf}, v{st0}, v{st0+2}")
        st.i(f"v_mov_b32 v{Bf+2}, 0")
        st.i(f"v_mov_b32 v{Bf+3}, 0")
        st.i(f"v_mul_f32 v{vC1}, 0x{f2u(C1):08x}, v{st0+1}")
        st.i(f"v_mul_f32 v{vC2}, v{st0+1}, v{st0+1}")
        st.i(f"v_mul_f32 v{vC2}, v{vC2}, v{st0+1}")
        st.i(f"v_mul_f32 v{vC2}, 0x{f2u(C2):08x}, v{vC2}")
        for a_ in Af:
            st.i(f"v_mov_b32 v{a_+2}, 0")
            st.i(f"v_mov_b32 v{a_+3}, 0")
        for cb in range(CB):
            a_ = Af[cb & 1]
            S_ = Sv4 + 4 * cb
            st.i(f"v_add_f32 v{S_}, v{S_}, v{S_+1}")
            st.i(f"v_add_f32 v{S_+2}, v{S_+2}, v{S_+3}")
            st.i(f"v_add_f32 v{S_}, v{S_}, v{S_+2}")
            st.i(f"v_cvt_pk_bf16_f32 v{a_}, v{S_}, v{S_}")
            st.i(f"v_and_b32 v{st0+2}, 0xffff0000, v{a_}")
            st.i(f"v_sub_f32 v{st0+2}, v{S_}, v{st0+2}")
            st.i(f"v_cvt_pk_bf16_f32 v{a_+1}, v{st0+2}, 0")
            st.i("s_nop 1")
            st.i(f"v_mfma_f32_32x32x16_bf16 {vr(acc[0][cb],16)}, {vr(a_,4)}, {vr(Bf,4)}, {vr(acc[0][cb],16)}")
    at.setdefault(8, []).append(corr)
    c = dict(P=CFG['k4'][0], R=CFG['k4'][1], rate=CFG['k4'][2], name='k4', RB=RB, CB=CB, NB=D*CB, NA=NA, NS=NS, KT=16, acc=acc, araw=araw, bfr=bfr, vA=vA, vBl=vBl, vBrd=vBrd,
             hook_pre=late_setup, at_tile=at,
             srdA=8, srdB=12, sregs=(24, 25), stage=STAGE, tileB=64 * 7168,
             dma=dma, sWave=sWave, swap=[1] * 7,
             b_imm=lambda kk, cb, q: (16 * kk + 8 * q) * 224 + cb * 32)
    gemm_core(g, c)
    ep = Alloc(araw[0])
    T = ep.get(8); O = [ep.get(4, 4) for _ in range(2)]
    vO = ep.get()
    g.e(f"s_mul_i32 s18, s{sRbg}, 224")
    g.e(f"s_mul_i32 s19, s{sNt}, 7")
    g.e("s_add_u32 s18, s18, s19")
    g.e("s_lshl_b32 s18, s18, 10")
    g.e(f"v_lshlrev_b32 v{vO}, 4, v{vLane}")
    g.e(f"v_add_u32 v{vO}, s18, v{vO}")
    g.e("s_mov_b32 s19, 4096")
    for cb in range(CB):
        a = acc[0][cb]
        for i in range(8): g.e(f"v_mul_f32 v{T+i}, v{a+i}, v{a+i}")
        for i in range(8): g.e(f"v_fma_f32 v{T+i}, v{T+i}, v{vC2}, v{vC1}")
        for i in range(8): g.e(f"v_mul_f32 v{T+i}, v{T+i}, v{a+i}")
        for i in range(8): g.e(f"v_exp_f32 v{T+i}, v{T+i}")
        for i in range(8): g.e(f"v_mul_f32 v{a+i}, v{a+i}, v{a+8+i}")
        for i in range(8): g.e(f"v_fma_f32 v{T+i}, v{T+i}, v{vI2}, v{vI2}")
        for i in range(8): g.e(f"v_rcp_f32 v{T+i}, v{T+i}")
        g.e("s_nop 0")
        for i in range(8): g.e(f"v_mul_f32 v{a+i}, v{a+i}, v{T+i}")
        o = O[cb & 1]
        for i in range(4): g.e(f"v_cvt_pk_bf16_f32 v{o+i}, v{a+2*i}, v{a+2*i+1}")
        if cb < 4: g.e(f"buffer_store_dwordx4 {vr(o,4)}, v{vO}, s[44:47], 0 offen offset:{cb*1024}")
        else: g.e(f"buffer_store_dwordx4 {vr(o,4)}, v{vO}, s[44:47], s19 offen offset:{(cb-4)*1024}")
    if STAMP:
        g.label(done + "_x")
        stamp(g, 4)
        g.e("s_waitcnt vmcnt(0)")
        stamp(g, 5)
        stamp_flush(g, 8)
    g.label(done)
    g.e("s_endpgm")
    return name, va.n, (256, 512, NS * STAGE)

def main(out):
    g = G()
    ks = []
    ks.append(k0(g))
    ks.append(k1(g))
    ks.append(k2(g))
    ks.append(k35(g, 3))
    ks.append(k4(g))
    ks.append(k35(g, 5))
    head = []
    for name, nv, (grid, blk, lds) in ks:
        head.append(f"; @launch kernel={name} grid=({grid},1,1) block=({blk},1,1) lds={lds}")
    head.append('.amdgcn_target "amdgcn-amd-amdhsa--gfx950"')
    head.append(".text")
    txt = "\n".join(head) + "\n" + g.text()
    txt += '.section .rodata,"a"\n'
    for name, nv, _ in ks:
        txt += ".p2align 6\n" + kernel_desc(name, nv)
    open(out, "w").write(txt)
    for name, nv, l in ks: print(name, "vgpr", nv, l)

if __name__ == "__main__":
    main(sys.argv[1] if len(sys.argv) > 1 else f"cdna_kernels/{NAME}.s")
```

```python
import sys, struct

NAME = "sequential_preLN__linear_attn_block__geglu_ffn__prompt"
MB = 1 << 20
WS_XN = 0 * MB
WS_PQ = 8 * MB
WS_KVP = 12 * MB
WS_ZP = 14 * MB
WS_O = 16 * MB
WS_H = 20 * MB
WS_ST = 26 * MB
WS_S = 27 * MB
WS_ACT = 32 * MB
WS_BYTES = 48 * MB
OOB = 0x7f000000
import os
HSTR = int(os.environ.get('GHSTR', '65536'))

def f2u(x):
    return struct.unpack("<I", struct.pack("<f", x))[0]

GSTK = os.environ.get("GSTK", "")
GSTM = os.environ.get("GSTM", "sc1")
class G:
    def __init__(self):
        self.cur = "k?"
        self.lines = []
        self.uid = 0
    def e(self, s):
        if s.startswith("buffer_store_dwordx4") and self.cur[1] in GSTK: s += " " + GSTM
        self.lines.append("    " + s)
    def label(self, s):
        self.lines.append(s + ":")
    def raw(self, s):
        self.lines.append(s)
    def newlabel(self, p="L"):
        self.uid += 1
        return f"{p}_{self.uid}"
    def text(self):
        return "\n".join(self.lines) + "\n"

def vr(b, n=1):
    return f"v{b}" if n == 1 else f"v[{b}:{b+n-1}]"
def sr(b, n=1):
    return f"s{b}" if n == 1 else f"s[{b}:{b+n-1}]"

class Alloc:
    def __init__(self, start=0, limit=256):
        self.n = start; self.limit = limit
    def get(self, cnt=1, align=1):
        self.n = (self.n + align - 1) // align * align
        b = self.n; self.n += cnt
        assert self.n <= self.limit, f"out of regs {self.n}"
        return b

def kernel_begin(g, name):
    g.cur = name
    g.raw(f".globl {name}")
    g.raw(".p2align 8")
    g.raw(f".type {name},@function")
    g.label(name)

def kernel_desc(name, nv, ns=96):
    nv = max(nv, 8)
    acc = (nv + 3) // 4 * 4
    return f""".amdhsa_kernel {name}
  .amdhsa_next_free_vgpr {nv}
  .amdhsa_next_free_sgpr {ns}
  .amdhsa_accum_offset {acc}
  .amdhsa_group_segment_fixed_size 0
  .amdhsa_kernarg_size 80
  .amdhsa_user_sgpr_count 2
  .amdhsa_user_sgpr_kernarg_segment_ptr 1
  .amdhsa_system_sgpr_workgroup_id_x 1
.end_amdhsa_kernel
"""

import os
NOPF = os.environ.get("GNOPF", "")
PF = "0" not in NOPF; PF1 = "1" not in NOPF; PF4 = "4" not in NOPF
PFS = int(os.environ.get("GPFS", "6"))
CFG = dict(k1=(2, 16, 2), k3=(2, 16, 2), k4=(2, 16, 2), k5=(2, 56, 2))
for kv in os.environ.get("GCFG", "").split(";"):
    if kv:
        k_, v_ = kv.split("="); CFG[k_] = tuple(int(x) for x in v_.split(","))
STAMP = os.environ.get("GSTAMP", "") != ""
def stamp(g, i):
    if not STAMP: return
    g.e(f"s_memtime s[{60+2*i}:{61+2*i}]")
    g.e("s_waitcnt lgkmcnt(0)")
def stamp_flush(g, n):
    if not STAMP: return
    L = g.newlabel("Lst")
    g.e("s_cmp_lg_u32 s2, 5")
    g.e(f"s_cbranch_scc1 {L}")
    g.e("s_mov_b64 exec, -1")
    g.e("s_load_dwordx2 s[80:81], s[0:1], 64")
    g.e("s_waitcnt lgkmcnt(0)")
    g.e("s_mov_b32 s82, 256")
    g.e("s_mov_b32 s83, 0x00020000")
    g.e("s_lshl_b32 s84, s3, 5")
    g.e("v_mov_b32 v0, s84")
    for i in range(n):
        g.e(f"s_sub_u32 s85, s{60+2*i}, s60")
        g.e("v_mov_b32 v1, s85")
        g.e(f"buffer_store_dword v1, v0, s[80:83], 0 offen offset:{4*i}")
    g.label(L)

def make_srd(g, d, base, nbytes, add=0):
    if add:
        g.e(f"s_add_u32 s{d}, s{base}, {add}")
        g.e(f"s_addc_u32 s{d+1}, s{base+1}, 0")
    else:
        g.e(f"s_mov_b32 s{d}, s{base}")
        g.e(f"s_mov_b32 s{d+1}, s{base+1}")
    g.e(f"s_mov_b32 s{d+2}, {nbytes}")
    g.e(f"s_mov_b32 s{d+3}, 0x00020000")

import os
DBG = set(os.environ.get("GDBG", "").split(","))
class Stream:
    def __init__(self):
        self.items = []
        self.vm = []; self.lg = []
        self.vm_done = 0; self.lg_done = 0
    def i(self, text):
        self.items.append(('i', text))
    def vmop(self, text, oid):
        self.items.append(('i', text)); self.vm.append(oid)
    def lgop(self, text, oid):
        self.items.append(('i', text)); self.lg.append(oid)
    def need(self, kind, oids):
        lst = self.vm if kind == 'vm' else self.lg
        done = self.vm_done if kind == 'vm' else self.lg_done
        idx = max(lst.index(o) for o in oids)
        if idx < done:
            self.items.append(['w', kind, None]); return
        n = len(lst) - 1 - idx
        cap = 63 if kind == 'vm' else 15
        n = min(n, cap)
        self.items.append(['w', kind, n])
        if kind == 'vm': self.vm_done = len(lst) - n
        else: self.lg_done = len(lst) - n

def gemm_core(g, c):
    MF = c.get('MF', 32)
    SPT = 4 if MF == 32 else 2
    AW = 16 if MF == 32 else 4
    op = "v_mfma_f32_32x32x16_bf16" if MF == 32 else "v_mfma_f32_16x16x32_bf16"
    RB, CB, NB, NA, NS, KT = c['RB'], c['CB'], c['NB'], c['NA'], c['NS'], c['KT']
    acc = c['acc']; araw = c['araw']; bfr = c['bfr']
    vA = c['vA']; vBl = c['vBl']; vBrd = c['vBrd']
    srdA = c['srdA']; srdB = c['srdB']
    sAe, sBe = c['sregs']
    stage = c['stage']; tileB = c['tileB']
    dma = c['dma']
    sWave = c['sWave']
    swap = c['swap']; b_imm = c['b_imm']
    bar_off = c.get('bar_off', 1)
    PB = NS - 1
    P = c.get('P', 2)
    rate = c.get('rate', 2)
    FT = SPT * CB
    assert NB <= FT
    cur = {'A': None, 'B': None}
    bq = []

    def a_reg(t, kk, rb): return araw[((t % NA) * SPT + kk) * RB + rb]
    def b_reg(f): return bfr[f % NB]
    def a_const(st, tt, kk, rb):
        if tt >= KT: return
        if cur['A'] != tt:
            st.i(f"s_mov_b32 s{sAe}, {tt*4096}"); cur['A'] = tt
        st.vmop(f"buffer_load_dwordx4 {vr(a_reg(tt,kk,rb),4)}, v{vA[rb]}, {sr(srdA,4)}, s{sAe} offen offset:{kk*(4096//SPT)}", ('A', tt, kk, rb))
    def d_const(st, tt, i):
        if tt >= KT: return
        vo, lc, half = dma[i]
        if cur['B'] != tt:
            st.i(f"s_mov_b32 s{sBe}, {tt*tileB}"); cur['B'] = tt
        st.i(f"s_add_u32 m0, s{sWave}, {(tt % NS) * stage + lc}")
        if half: st.i("s_mov_b32 exec_hi, 0")
        else: st.i("s_nop 0")
        st.vmop(f"buffer_load_dwordx4 v{vo}, {sr(srdB,4)}, s{sBe} offen lds", ('D', tt, i))
        if half: st.i("s_mov_b32 exec_hi, -1")
    def issue_reads(st, f):
        if f >= FT * KT: return
        s_, cb = divmod(f, CB)
        for q in range(2):
            st.lgop(f"ds_read_b64_tr_b16 {vr(b_reg(f)+2*q,2)}, v{vBrd} offset:{b_imm(s_ % SPT, cb, q)}", ('R', f, q))

    def gen_tile(st, t):
        for fn in c.get('at_tile', {}).get(t, []): fn(st, bq)
        fbar = (t + 1) * FT - NB + bar_off
        deferred = []
        for kk in range(SPT):
            s = SPT * t + kk
            if s >= 1:
                pt, pk = divmod(s - 1, SPT)
                for rb in range(RB):
                    bq.append(lambda tgt=pt + NA, pk=pk, rb=rb: a_const(st, tgt, pk, rb))
            for cb in range(CB):
                f = s * CB + cb
                st.need('lg', [('R', f, 0), ('R', f, 1)])
                if cb == 0:
                    st.need('vm', [('A', t, kk, rb) for rb in range(RB)])
                for rb in range(RB):
                    a = a_reg(t, kk, rb); b = b_reg(f)
                    x, y = (b, a) if swap[cb] else (a, b)
                    st.i(f"{op} {vr(acc[rb][cb],AW)}, {vr(x,4)}, {vr(y,4)}, {vr(acc[rb][cb],AW) if s else 0}")
                if f == fbar and t < KT - 1:
                    st.need('vm', [('D', t + 1, i) for i in range(len(dma))])
                    st.i("s_barrier")
                    st.i(f"v_add_u32 v{vBrd}, {((t + 1) % NS) * stage}, v{vBl}")
                    for i in range(len(dma)):
                        bq.append(lambda tt=t + PB, i=i: d_const(st, tt, i))
                    for df in deferred: issue_reads(st, df)
                    deferred = []
                if f + NB >= (t + 1) * FT and f < fbar: deferred.append(f + NB)
                else: issue_reads(st, f + NB)
                for _ in range(rate):
                    if bq: bq.pop(0)()
                if c.get('slot_hook'): c['slot_hook'](st, t, kk, cb)

    st = Stream()
    for tt in range(P):
        for i in range(len(dma)): d_const(st, tt, i)
        for kk in range(SPT):
            for rb in range(RB): a_const(st, tt, kk, rb)
    for tt in range(P, max(PB, NA)):
        if tt < PB:
            for i in range(len(dma)): bq.append(lambda tt=tt, i=i: d_const(st, tt, i))
        if tt < NA:
            for kk in range(SPT):
                for rb in range(RB): bq.append(lambda tt=tt, kk=kk, rb=rb: a_const(st, tt, kk, rb))
    if c.get('hook_pre'): c['hook_pre'](st)
    if STAMP: st.i("s_memtime s[72:73]"); st.i("s_waitcnt lgkmcnt(0)")
    st.need('vm', [('D', 0, i) for i in range(len(dma))])
    st.i("s_barrier")
    if STAMP: st.i("s_memtime s[74:75]"); st.i("s_waitcnt lgkmcnt(0)")
    st.i(f"v_mov_b32 v{vBrd}, v{vBl}")
    for f in range(NB): issue_reads(st, f)
    n_pro = len(st.items)
    for t in range(KT): gen_tile(st, t)
    while bq: bq.pop(0)()
    dbg = DBG if c.get('name') in DBG else set()
    def out(items, loop=False):
        for it in items:
            if it[0] == 'i':
                t_ = it[1]
                if loop:
                    if 'nodma' in dbg and t_.endswith('lds'): continue
                    if 'noaload' in dbg and t_.startswith('buffer_load') and not t_.endswith('lds'): continue
                    if 'nobar' in dbg and t_ == 's_barrier': continue
                    if 'nomfma' in dbg and t_.startswith('v_mfma'): continue
                    if 'noread' in dbg and t_.startswith('ds_read'): continue
                g.e(it[1])
            elif it[2] is not None:
                g.e(f"s_waitcnt {'vmcnt' if it[1]=='vm' else 'lgkmcnt'}({it[2]})")
    c['nbar'] = sum(1 for it in st.items if it[0] == 'i' and it[1] == 's_barrier')
    out(st.items[:n_pro])
    stamp(g, 1)
    out(st.items[n_pro:], True)
    stamp(g, 2)
    g.e("s_waitcnt lgkmcnt(0)" if c.get('no_final_vm') else "s_waitcnt vmcnt(0) lgkmcnt(0)")
    g.e("s_nop 15")
    stamp(g, 3)

LOG2E = 1.4426950408889634

def common_entry(g, nwg, vLane, sWv, done):
    g.e(f"s_cmp_ge_u32 s2, {nwg}")
    g.e(f"s_cbranch_scc1 {done}")
    g.e(f"v_and_b32 v{vLane}, 63, v0")
    g.e(f"v_lshrrev_b32 v1, 6, v0")
    g.e("s_nop 0")
    g.e(f"v_readfirstlane_b32 s{sWv}, v1")
    stamp(g, 0)

def emit_vBl_std(g, vBl, vLane, t):
    g.e(f"v_lshrrev_b32 v{vBl}, 5, v{vLane}")
    g.e(f"v_lshlrev_b32 v{vBl}, 8, v{vBl}")
    g.e(f"v_bfe_u32 v{t}, v{vLane}, 2, 2")
    g.e(f"v_lshl_add_u32 v{vBl}, v{t}, 6, v{vBl}")
    g.e(f"v_bfe_u32 v{t}, v{vLane}, 4, 1")
    g.e(f"v_lshl_add_u32 v{vBl}, v{t}, 5, v{vBl}")
    g.e(f"v_and_b32 v{t}, 3, v{vLane}")
    g.e(f"v_lshl_add_u32 v{vBl}, v{t}, 3, v{vBl}")

def emit_dma_lane_std(g, vD, vLane, t, ldb, sT):
    g.e(f"v_bfe_u32 v{t}, v{vLane}, 2, 3")
    g.e(f"s_mov_b32 s{sT}, {ldb}")
    g.e(f"v_mul_lo_u32 v{vD}, v{t}, s{sT}")
    g.e(f"v_lshrrev_b32 v{t}, 5, v{vLane}")
    g.e(f"v_lshl_add_u32 v{vD}, v{t}, 6, v{vD}")
    g.e(f"v_and_b32 v{t}, 3, v{vLane}")
    g.e(f"v_lshl_add_u32 v{vD}, v{t}, 4, v{vD}")

def zero_regs(g, base, n):
    for i in range(n): g.e(f"v_mov_b32 v{base+i}, 0")

def k0(g):
    name = "k0_ln_kernel"
    kernel_begin(g, name)
    done = "k0_done"
    sWv = 3
    X0 = int(os.environ.get("GX0", "0"))
    common_entry(g, 256 + X0, 2, sWv, done)
    if X0:
        g.e("s_cmp_ge_u32 s2, 256")
        g.e("s_cbranch_scc1 k0_pf")
    g.e("s_load_dwordx4 s[4:7], s[0:1], 0")
    g.e("s_load_dwordx2 s[28:29], s[0:1], 72")
    g.e("v_and_b32 v3, 7, v2")
    g.e("v_lshrrev_b32 v4, 3, v2")
    g.e("s_lshl_b32 s16, s2, 3")
    g.e("v_add_u32 v5, s16, v3")
    g.e("v_lshlrev_b32 v5, 11, v5")
    g.e("s_lshl_b32 s17, s3, 4")
    g.e("v_add_u32 v6, s17, v4")
    g.e("v_lshl_add_u32 v5, v6, 5, v5")
    g.e("s_waitcnt lgkmcnt(0)")
    make_srd(g, 8, 4, 4 * MB)
    make_srd(g, 12, 28, 4 * MB, WS_XN)
    g.e("buffer_load_dwordx4 v[8:11], v5, s[8:11], 0 offen")
    g.e("buffer_load_dwordx4 v[12:15], v5, s[8:11], 0 offen offset:16")
    g.e("buffer_load_dwordx4 v[16:19], v5, s[8:11], 0 offen offset:256")
    g.e("buffer_load_dwordx4 v[20:23], v5, s[8:11], 0 offen offset:272")
    if PF:
        make_srd(g, 24, 6, 1024 * 6144)
        g.e(f"s_lshl_b32 s22, s2, {PFS+8}")
        g.e(f"v_lshl_add_u32 v28, v0, {PFS}, s22")
        g.e(f"s_mov_b32 s23, {4*MB}")
        g.e("buffer_load_dword v29, v28, s[24:27], 0 offen")
        g.e(f"buffer_load_dword v30, v28, s[24:27], s23 offen" if PFS == 6 else "s_nop 0")
    g.e("s_lshr_b32 s18, s2, 2")
    g.e("s_lshl_b32 s18, s18, 16")
    g.e("s_and_b32 s19, s2, 3")
    g.e("s_lshl_b32 s19, s19, 7")
    g.e("s_add_u32 s18, s18, s19")
    g.e("v_lshlrev_b32 v7, 10, v6")
    g.e("v_lshl_add_u32 v7, v3, 4, v7")
    g.e("v_add_u32 v7, s18, v7")
    g.e("v_mov_b32 v24, 0")
    g.e("v_mov_b32 v25, 0")
    g.e(f"s_waitcnt vmcnt({(2 if PFS == 6 else 1) if PF else 0})")
    for d in range(16):
        g.e(f"v_lshlrev_b32 v{32+2*d}, 16, v{8+d}")
        g.e(f"v_and_b32 v{33+2*d}, 0xffff0000, v{8+d}")
    for i in range(32):
        g.e(f"v_add_f32 v24, v24, v{32+i}")
        g.e(f"v_fma_f32 v25, v{32+i}, v{32+i}, v25")
    g.e("s_nop 1")
    g.e("v_add_f32_dpp v24, v24, v24 row_ror:8 row_mask:0xf bank_mask:0xf")
    g.e("v_add_f32_dpp v25, v25, v25 row_ror:8 row_mask:0xf bank_mask:0xf")
    for op in ("v_permlane16_swap_b32", "v_permlane32_swap_b32"):
        g.e("v_mov_b32 v26, v24")
        g.e("v_mov_b32 v27, v25")
        g.e("s_nop 1")
        g.e(f"{op} v24, v26")
        g.e(f"{op} v25, v27")
        g.e("s_nop 1")
        g.e("v_add_f32 v24, v24, v26")
        g.e("v_add_f32 v25, v25, v27")
    g.e("s_lshl_b32 s20, s3, 6")
    g.e("v_lshlrev_b32 v26, 3, v3")
    g.e("v_add_u32 v27, s20, v26")
    g.e("ds_write_b64 v27, v[24:25]")
    g.e("s_waitcnt lgkmcnt(0)")
    g.e("s_barrier")
    g.e("ds_read_b64 v[8:9], v26")
    g.e("ds_read_b64 v[10:11], v26 offset:64")
    g.e("ds_read_b64 v[12:13], v26 offset:128")
    g.e("ds_read_b64 v[14:15], v26 offset:192")
    g.e("s_waitcnt lgkmcnt(0)")
    g.e("v_add_f32 v8, v8, v10")
    g.e("v_add_f32 v9, v9, v11")
    g.e("v_add_f32 v12, v12, v14")
    g.e("v_add_f32 v13, v13, v15")
    g.e("v_add_f32 v8, v8, v12")
    g.e("v_add_f32 v9, v9, v13")
    g.e(f"v_mul_f32 v8, 0x{f2u(1/1024):08x}, v8")
    g.e(f"v_mul_f32 v9, 0x{f2u(1/1024):08x}, v9")
    g.e("v_fma_f32 v9, -v8, v8, v9")
    g.e("v_max_f32 v9, 0, v9")
    g.e(f"v_add_f32 v9, 0x{f2u(1e-5):08x}, v9")
    g.e("v_rsq_f32 v9, v9")
    g.e("s_nop 0")
    g.e("v_mul_f32 v8, v8, v9")
    for i in range(32):
        g.e(f"v_fma_f32 v{32+i}, v{32+i}, v9, -v8")
    for grp in range(2):
        b = 32 + 16 * grp; o = 8 + 8 * grp
        for k, e in enumerate((0, 2, 8, 10, 4, 6, 12, 14)):
            g.e(f"v_cvt_pk_bf16_f32 v{o+k}, v{b+e}, v{b+e+1}")
    g.e("s_mov_b32 s21, 8192")
    g.e("buffer_store_dwordx4 v[8:11], v7, s[12:15], 0 offen")
    g.e("buffer_store_dwordx4 v[12:15], v7, s[12:15], 0 offen offset:512")
    g.e("buffer_store_dwordx4 v[16:19], v7, s[12:15], s21 offen")
    g.e("buffer_store_dwordx4 v[20:23], v7, s[12:15], s21 offen offset:512")
    g.e("s_waitcnt vmcnt(0)")
    if STAMP:
        g.label(done + "_x")
        stamp(g, 4)
        g.e("s_waitcnt vmcnt(0)")
        stamp(g, 5)
        stamp_flush(g, 8)
    g.label(done)
    g.e("s_endpgm")
    if X0:
        g.label("k0_pf")
        g.e("s_load_dwordx4 s[8:11], s[0:1], 32")
        g.e("s_sub_u32 s16, s2, 256")
        per = 7168 * 1024 // X0
        g.e(f"s_mul_i32 s16, s16, {per}")
        g.e("v_lshl_add_u32 v4, v0, 6, s16")
        g.e("s_waitcnt lgkmcnt(0)")
        make_srd(g, 12, 8, 1024 * 7168)
        make_srd(g, 20, 10, 1024 * 7168)
        for i in range(-(-per // 16384)):
            g.e(f"s_mov_b32 s17, {i*16384}")
            g.e("buffer_load_dword v5, v4, s[12:15], s17 offen")
            g.e("buffer_load_dword v6, v4, s[20:23], s17 offen")
        g.e("s_waitcnt vmcnt(0)")
        g.e("s_endpgm")
    return name, 64, (256 + X0, 256, 256)

def emit_phi(g, r, t):
    g.e(f"v_mul_f32 v{t}, 0x{f2u(LOG2E):08x}, v{r}")
    g.e(f"v_min_f32 v{t}, 0, v{t}")
    g.e(f"v_exp_f32 v{t}, v{t}")
    g.e(f"v_add_f32 v{r}, 0x{f2u(1e-6):08x}, v{r}")
    g.e(f"v_max_f32 v{r}, 0x{f2u(1e-6):08x}, v{r}")
    g.e(f"v_add_f32 v{r}, v{r}, v{t}")

def k1(g, NA=4, NS=5):
    name = "k1_qkv_kernel"
    kernel_begin(g, name)
    done = "k1_done"
    va = Alloc(4)
    vLane = 2; vT = 3
    sWv = 3
    common_entry(g, 256, vLane, sWv, done)
    g.e("s_load_dwordx2 s[4:5], s[0:1], 8")
    g.e("s_load_dwordx2 s[6:7], s[0:1], 72")
    if PF1:
        g.e(f"s_cmp_eq_u32 s{sWv}, 4")
        g.e("s_cbranch_scc1 k1_pf")
    sMt, sJ = 20, 21
    g.e("s_and_b32 s16, s2, 7")
    g.e("s_lshr_b32 s17, s2, 3")
    g.e("s_and_b32 s18, s16, 1")
    g.e("s_lshl_b32 s18, s18, 3")
    g.e("s_and_b32 s19, s17, 7")
    g.e(f"s_add_u32 s{sMt}, s18, s19")
    g.e("s_lshr_b32 s18, s16, 1")
    g.e("s_lshl_b32 s18, s18, 2")
    g.e("s_lshr_b32 s19, s17, 3")
    g.e(f"s_add_u32 s{sJ}, s18, s19")
    RB, CB, D = 1, 6, 1
    acc = [[va.get(16, 4) for cb in range(CB)]]
    araw = [va.get(4, 4) for _ in range(NA * 4 * RB)]
    bfr = [va.get(4, 4) for _ in range(D * CB)]
    vA = [va.get()]; vBl = va.get(); vBrd = va.get()
    vD = [va.get() for _ in range(6)]
    sRbg = 22
    g.e(f"s_lshl_b32 s{sRbg}, s{sMt}, 2")
    g.e(f"s_add_u32 s{sRbg}, s{sRbg}, s{sWv}")
    g.e(f"s_lshl_b32 s16, s{sRbg}, 16")
    g.e(f"v_lshlrev_b32 v{vA[0]}, 4, v{vLane}")
    g.e(f"v_add_u32 v{vA[0]}, s16, v{vA[0]}")
    emit_vBl_std(g, vBl, vLane, vT)
    emit_dma_lane_std(g, vD[0], vLane, vT, 6144, 16)
    g.e(f"s_mul_i32 s16, s{sWv}, {16*6144}")
    g.e(f"s_lshl_b32 s17, s{sJ}, 7")
    g.e("s_add_u32 s16, s16, s17")
    g.e(f"v_add_u32 v{vD[0]}, s16, v{vD[0]}")
    dma = []
    for kbs in range(2):
        for seg in range(3):
            i = kbs * 3 + seg
            if i: g.e(f"v_add_u32 v{vD[i]}, {kbs*8*6144 + seg*2048}, v{vD[0]}")
            dma.append((vD[i], (kbs * 3 + seg) * 1024, False))
    sWave = 23
    g.e(f"s_mul_i32 s{sWave}, s{sWv}, 6144")
    g.e("s_waitcnt lgkmcnt(0)")
    make_srd(g, 8, 6, 4 * MB, WS_XN)
    make_srd(g, 12, 4, 1024 * 6144)
    pfc = {}
    c = dict(pfc, P=CFG['k1'][0], R=CFG['k1'][1], rate=CFG['k1'][2], name='k1', RB=RB, CB=CB, NB=D*CB, NA=NA, NS=NS, KT=16, acc=acc, araw=araw, bfr=bfr, vA=vA, vBl=vBl, vBrd=vBrd,
             srdA=8, srdB=12, sregs=(24, 25), stage=24576, tileB=64 * 6144,
             dma=dma, sWave=sWave, swap=[1, 1, 0, 0, 0, 0],
             b_imm=lambda kk, cb, q: ((2 * kk + q) * 3 + (cb >> 1)) * 1024 + (cb & 1) * 512)
    gemm_core(g, c)
    make_srd(g, 36, 6, 4 * MB, WS_PQ)
    make_srd(g, 40, 6, 2 * MB, WS_KVP)
    make_srd(g, 44, 6, 64 * 1024, WS_ZP)
    ep = Alloc(araw[0])
    t0 = ep.get(4)
    for cb in range(4):
        for i in range(16):
            emit_phi(g, acc[0][cb] + i, t0 + (i & 3))
    pk = [ep.get(8, 4) for _ in range(6)]
    for cb in range(6):
        for i in range(8):
            g.e(f"v_cvt_pk_bf16_f32 v{pk[cb]+i}, v{acc[0][cb]+2*i}, v{acc[0][cb]+2*i+1}")
    g.e(f"s_lshl_b32 s16, s{sJ}, 12")
    for cb in range(2):
        for s in range(2):
            g.e(f"buffer_store_dwordx4 {vr(pk[cb]+4*s,4)}, v{vA[0]}, s[36:39], s16 offen offset:{(2*cb+s)*1024}")
    ones = ep.get(4, 4)
    for i in range(4): g.e(f"v_mov_b32 v{ones+i}, 0x3f803f80")
    kvz = [acc[0][0], acc[0][1], acc[0][2], acc[0][3]]
    zero_regs(g, kvz[0], 64)
    g.e("s_nop 1")
    for hh in range(2):
        for s in range(2):
            g.e(f"v_mfma_f32_32x32x16_bf16 {vr(kvz[hh],16)}, {vr(pk[2+hh]+4*s,4)}, {vr(pk[4+hh]+4*s,4)}, {vr(kvz[hh],16)}")
            g.e(f"v_mfma_f32_32x32x16_bf16 {vr(kvz[2+hh],16)}, {vr(pk[2+hh]+4*s,4)}, {vr(ones,4)}, {vr(kvz[2+hh],16)}")
    g.e("s_barrier")
    g.e("s_nop 15")
    vL = ep.get(); vL2 = ep.get()
    g.e(f"v_lshlrev_b32 v{vL}, 4, v{vLane}")
    g.e(f"s_lshl_b32 s16, s{sWv}, 14")
    g.e(f"v_add_u32 v{vL2}, s16, v{vL}")
    for it in range(4):
        for q in range(4):
            g.e(f"ds_write_b128 v{vL2}, {vr(kvz[it]+4*q,4)} offset:{it*4096+q*1024}")
    g.e("s_waitcnt lgkmcnt(0)")
    g.e("s_barrier")
    g.e(f"s_lshl_b32 s16, s{sWv}, 12")
    g.e(f"v_add_u32 v{vL2}, s16, v{vL}")
    for w in range(4):
        for q in range(4):
            g.e(f"ds_read_b128 {vr(kvz[w]+4*q,4)}, v{vL2} offset:{w*16384+q*1024}")
    g.e("s_waitcnt lgkmcnt(0)")
    for i in range(16):
        g.e(f"v_add_f32 v{kvz[0]+i}, v{kvz[0]+i}, v{kvz[1]+i}")
        g.e(f"v_add_f32 v{kvz[2]+i}, v{kvz[2]+i}, v{kvz[3]+i}")
        g.e(f"v_add_f32 v{kvz[0]+i}, v{kvz[0]+i}, v{kvz[2]+i}")
    g.e(f"s_and_b32 s16, s{sWv}, 1")
    g.e(f"s_lshl_b32 s17, s{sJ}, 1")
    g.e("s_add_u32 s16, s16, s17")
    g.e(f"s_lshl_b32 s17, s{sMt}, 5")
    g.e("s_add_u32 s16, s16, s17")
    g.e(f"s_cmp_ge_u32 s{sWv}, 2")
    g.e("s_cbranch_scc1 k1_z")
    g.e("s_lshl_b32 s16, s16, 12")
    for q in range(4):
        g.e(f"buffer_store_dwordx4 {vr(kvz[0]+4*q,4)}, v{vL}, s[40:43], s16 offen offset:{q*1024}")
    g.e(f"s_branch {done}" + ("_x" if STAMP else ""))
    g.label("k1_z")
    g.e("s_lshl_b32 s16, s16, 7")
    g.e(f"v_lshrrev_b32 v{vL}, 5, v{vLane}")
    g.e(f"v_lshlrev_b32 v{vL}, 6, v{vL}")
    g.e("s_mov_b32 exec_lo, 1")
    g.e("s_mov_b32 exec_hi, 1")
    for q in range(4):
        g.e(f"buffer_store_dwordx4 {vr(kvz[0]+4*q,4)}, v{vL}, s[44:47], s16 offen offset:{q*16}")
    if STAMP:
        g.label(done + "_x")
        stamp(g, 4)
        g.e("s_waitcnt vmcnt(0)")
        stamp(g, 5)
        stamp_flush(g, 8)
    g.label(done)
    g.e("s_endpgm")
    if PF1:
        g.label("k1_pf")
        g.e("s_load_dwordx2 s[48:49], s[0:1], 16")
        g.e("s_load_dwordx4 s[52:55], s[0:1], 32")
        g.e("s_load_dwordx2 s[56:57], s[0:1], 48")
        g.e(f"s_lshl_b32 s16, s2, {PFS+6}")
        g.e(f"v_lshl_add_u32 v4, v{vLane}, {PFS}, s16")
        g.e("s_waitcnt lgkmcnt(0)")
        make_srd(g, 8, 48, 2 * MB)
        make_srd(g, 12, 52, 1024 * 7168)
        make_srd(g, 16, 54, 1024 * 7168)
        make_srd(g, 24, 56, 3584 * 2048)
        SH = PFS
        step = 256 << (SH + 6)
        jobs = [(8, i) for i in range(-(-2 * MB // step))] + [(x, i) for i in range(-(-7168 * 1024 // step)) for x in (12, 16)]
        if os.environ.get("GWOONLY"): jobs = jobs[:2]
        start = CFG['k1'][3] if len(CFG['k1']) > 3 else 12
        per = CFG['k1'][4] if len(CFG['k1']) > 4 else 4
        for b in range(c['nbar'] + 2):
            g.e("s_barrier")
            if b < start: continue
            for _ in range(per):
                if jobs:
                    srd, i = jobs.pop(0)
                    g.e(f"s_mov_b32 s28, {i*step}")
                    g.e(f"buffer_load_dword v5, v4, {sr(srd,4)}, s28 offen")
        assert not jobs
        g.e("s_waitcnt vmcnt(0)")
        g.e("s_endpgm")
    return name, va.n, (256, 320 if PF1 else 256, NS * 24576)

def k2(g):
    name = "k2_att_kernel"
    kernel_begin(g, name)
    done = "k2_done"
    vLane = 2; sWv = 3
    common_entry(g, 256, vLane, sWv, done)
    g.e("s_load_dwordx2 s[6:7], s[0:1], 72")
    sH, sC = 20, 21
    g.e("s_and_b32 s16, s2, 7")
    g.e("s_lshl_b32 s16, s16, 2")
    g.e("s_bfe_u32 s17, s2, 0x20003")
    g.e(f"s_add_u32 s{sH}, s16, s17")
    g.e(f"s_lshr_b32 s{sC}, s2, 5")
    g.e(f"v_lshlrev_b32 v3, 4, v{vLane}")
    g.e(f"v_lshrrev_b32 v4, 5, v{vLane}")
    g.e("v_lshlrev_b32 v4, 6, v4")
    g.e("s_waitcnt lgkmcnt(0)")
    make_srd(g, 8, 6, 2 * MB, WS_KVP)
    make_srd(g, 12, 6, 64 * 1024, WS_ZP)
    make_srd(g, 24, 6, 4 * MB, WS_PQ)
    make_srd(g, 28, 6, 4 * MB, WS_O)
    g.e(f"s_lshl_b32 s16, s{sWv}, 7")
    g.e(f"s_add_u32 s16, s16, s{sH}")
    KV = 16; Z = 80
    for i in range(4):
        g.e(f"s_add_u32 s17, s16, {32*i}")
        g.e("s_lshl_b32 s18, s17, 12")
        g.e("s_lshl_b32 s19, s17, 7")
        for q in range(4):
            g.e(f"buffer_load_dwordx4 {vr(KV+16*i+4*q,4)}, v3, s[8:11], s18 offen offset:{q*1024}")
        for q in range(4):
            g.e(f"buffer_load_dwordx4 {vr(Z+16*i+4*q,4)}, v4, s[12:15], s19 offen offset:{q*16}")
    PQ = 144
    g.e(f"s_lshl_b32 s16, s{sC}, 3")
    g.e(f"s_lshl_b32 s17, s{sWv}, 1")
    g.e("s_add_u32 s16, s16, s17")
    g.e("s_lshl_b32 s16, s16, 16")
    g.e(f"s_lshl_b32 s17, s{sH}, 11")
    g.e("s_add_u32 s22, s16, s17")
    g.e("s_add_u32 s23, s22, 65536")
    for b in range(2):
        for s in range(2):
            g.e(f"buffer_load_dwordx4 {vr(PQ+8*b+4*s,4)}, v3, s[24:27], s{22+b} offen offset:{s*1024}")
    stamp(g, 6)
    g.e("s_waitcnt vmcnt(4)")
    stamp(g, 1)
    for base in (KV, Z):
        for i in range(16):
            g.e(f"v_add_f32 v{base+i}, v{base+i}, v{base+16+i}")
            g.e(f"v_add_f32 v{base+32+i}, v{base+32+i}, v{base+48+i}")
            g.e(f"v_add_f32 v{base+i}, v{base+i}, v{base+32+i}")
    g.e(f"s_lshl_b32 s16, s{sWv}, 13")
    g.e("v_add_u32 v5, s16, v3")
    for k, base in enumerate((KV, Z)):
        for q in range(4):
            g.e(f"ds_write_b128 v5, {vr(base+4*q,4)} offset:{k*4096+q*1024}")
    g.e("s_waitcnt lgkmcnt(0)")
    g.e("s_barrier")
    stamp(g, 2)
    for k, base in enumerate((KV, Z)):
        for w in range(4):
            for q in range(4):
                g.e(f"ds_read_b128 {vr(base+16*w+4*q,4)}, v3 offset:{w*8192+k*4096+q*1024}")
        g.e("s_waitcnt lgkmcnt(0)")
        for i in range(16):
            g.e(f"v_add_f32 v{base+i}, v{base+i}, v{base+16+i}")
            g.e(f"v_add_f32 v{base+32+i}, v{base+32+i}, v{base+48+i}")
            g.e(f"v_add_f32 v{base+i}, v{base+i}, v{base+32+i}")
    KF = 160; ZF = 168
    for i in range(8):
        g.e(f"v_cvt_pk_bf16_f32 v{KF+i}, v{KV+2*i}, v{KV+2*i+1}")
        g.e(f"v_cvt_pk_bf16_f32 v{ZF+i}, v{Z+2*i}, v{Z+2*i+1}")
    NUM = [16, 32]; DEN = [48, 64]
    zero_regs(g, 16, 64)
    g.e("s_waitcnt vmcnt(0)")
    stamp(g, 3)
    for b in range(2):
        for s in range(2):
            g.e(f"v_mfma_f32_32x32x16_bf16 {vr(NUM[b],16)}, {vr(KF+4*s,4)}, {vr(PQ+8*b+4*s,4)}, {vr(NUM[b],16)}")
            g.e(f"v_mfma_f32_32x32x16_bf16 {vr(DEN[b],16)}, {vr(ZF+4*s,4)}, {vr(PQ+8*b+4*s,4)}, {vr(DEN[b],16)}")
    g.e("s_nop 15")
    for b in range(2):
        g.e(f"v_add_f32 v{DEN[b]}, 0x{f2u(1e-6):08x}, v{DEN[b]}")
        g.e(f"v_rcp_f32 v{DEN[b]}, v{DEN[b]}")
    g.e("s_nop 0")
    OUT = 80
    for b in range(2):
        for i in range(16):
            g.e(f"v_mul_f32 v{NUM[b]+i}, v{NUM[b]+i}, v{DEN[b]}")
        for i in range(8):
            g.e(f"v_cvt_pk_bf16_f32 v{OUT+8*b+i}, v{NUM[b]+2*i}, v{NUM[b]+2*i+1}")
        for s in range(2):
            g.e(f"buffer_store_dwordx4 {vr(OUT+8*b+4*s,4)}, v3, s[28:31], s{22+b} offen offset:{s*1024}")
    if STAMP:
        g.label(done + "_x")
        stamp(g, 4)
        g.e("s_waitcnt vmcnt(0)")
        stamp(g, 5)
        stamp_flush(g, 8)
    g.label(done)
    g.e("s_endpgm")
    return name, 176, (256, 256, 32768)

def k35(g, which, NA=8, NS=8):
    is3 = which == 3
    name = "k3_wo_kernel" if is3 else "k5_down_kernel"
    KT = 16 if is3 else 56
    KS = KT * 4
    kernel_begin(g, name)
    done = f"k{which}_done"
    va = Alloc(4)
    vLane = 2; vT = 3; sWv = 3
    common_entry(g, 256, vLane, sWv, done)
    g.e(f"s_load_dwordx2 s[4:5], s[0:1], {16 if is3 else 48}")
    g.e("s_load_dwordx2 s[6:7], s[0:1], 72")
    g.e(f"s_load_dwordx2 s[34:35], s[0:1], {0 if is3 else 56}")
    if is3: g.e("s_load_dwordx4 s[44:47], s[0:1], 32")
    sMt, sNt = 20, 21
    g.e("s_and_b32 s16, s2, 7")
    g.e("s_lshr_b32 s17, s2, 3")
    g.e("s_lshr_b32 s18, s16, 1")
    g.e("s_lshl_b32 s18, s18, 2")
    g.e("s_and_b32 s19, s17, 3")
    g.e(f"s_add_u32 s{sMt}, s18, s19")
    g.e("s_and_b32 s18, s16, 1")
    g.e("s_lshl_b32 s18, s18, 3")
    g.e("s_lshr_b32 s19, s17, 2")
    g.e(f"s_add_u32 s{sNt}, s18, s19")
    RB, CB, D = 1, 2, 4
    acc = [[va.get(16, 4) for cb in range(CB)]]
    res = va.get(16, 4)
    araw = [va.get(4, 4) for _ in range(NA * 4 * RB)]
    bfr = [va.get(4, 4) for _ in range(D * CB)]
    vA = [va.get()]; vBl = va.get(); vBrd = va.get()
    vD = [va.get() for _ in range(2)]
    vH = va.get(); vR = va.get()
    sRbg = 22
    g.e(f"s_lshl_b32 s{sRbg}, s{sMt}, 2")
    g.e(f"s_add_u32 s{sRbg}, s{sRbg}, s{sWv}")
    g.e(f"s_mul_i32 s16, s{sRbg}, {KS*1024}")
    g.e(f"v_lshlrev_b32 v{vA[0]}, 4, v{vLane}")
    g.e(f"v_add_u32 v{vA[0]}, s16, v{vA[0]}")
    g.e(f"s_mul_i32 s16, s{sRbg}, {HSTR}")
    g.e(f"s_lshl_b32 s17, s{sNt}, 12")
    g.e("s_add_u32 s16, s16, s17")
    g.e(f"v_lshlrev_b32 v{vH}, 4, v{vLane}")
    g.e(f"v_add_u32 v{vH}, s16, v{vH}")
    g.e(f"v_and_b32 v{vR}, 31, v{vLane}")
    g.e(f"v_lshlrev_b32 v{vR}, 11, v{vR}")
    g.e(f"v_lshrrev_b32 v{vT}, 5, v{vLane}")
    g.e(f"v_lshl_add_u32 v{vR}, v{vT}, 4, v{vR}")
    g.e(f"s_lshl_b32 s16, s{sRbg}, 16")
    g.e(f"s_lshl_b32 s17, s{sNt}, 7")
    g.e("s_add_u32 s16, s16, s17")
    g.e(f"v_add_u32 v{vR}, s16, v{vR}")
    emit_vBl_std(g, vBl, vLane, vT)
    emit_dma_lane_std(g, vD[0], vLane, vT, 2048, 16)
    g.e(f"s_mul_i32 s16, s{sWv}, {16*2048}")
    g.e(f"s_lshl_b32 s17, s{sNt}, 7")
    g.e("s_add_u32 s16, s16, s17")
    g.e(f"v_add_u32 v{vD[0]}, s16, v{vD[0]}")
    g.e(f"v_add_u32 v{vD[1]}, {8*2048}, v{vD[0]}")
    dma = [(vD[0], 0, False), (vD[1], 1024, False)]
    sWave = 23
    g.e(f"s_lshl_b32 s{sWave}, s{sWv}, 11")
    g.e("s_waitcnt lgkmcnt(0)")
    if is3: make_srd(g, 8, 6, 4 * MB, WS_O)
    else: make_srd(g, 8, 6, 64 * 224 * 1024, WS_ACT)
    make_srd(g, 12, 4, KT * 64 * 2048)
    make_srd(g, 36, 6, 64 * HSTR, WS_H)
    make_srd(g, 40, 34, 4 * MB)
    def hook_pre(st):
        for j in range(4):
            if is3: st.vmop(f"buffer_load_dwordx4 {vr(res+4*j,4)}, v{vR}, s[40:43], 0 offen offset:{j*32}", ('X', j))
            else: st.vmop(f"buffer_load_dwordx4 {vr(res+4*j,4)}, v{vH}, s[36:39], 0 offen offset:{j*1024}", ('X', j))
    cf = CFG[f'k{which}']
    at = {}
    if is3:
        vC = va.get()
        spare = [va.get(4, 4) for _ in range(9)]
        cdst = spare + araw[0:4] + araw[4:7]
        T0 = cf[3] if len(cf) > 3 else 8
        ctile = [T0] * 9 + [9] * 4 + [10] * 3
        def cs_setup(st, bq):
            n0 = len(g.lines)
            g.e("s_sub_u32 s17, s2, 112")
            g.e("s_cmp_ge_u32 s2, 112")
            g.e("s_cselect_b32 s17, s17, s2")
            g.e("s_cselect_b32 s50, 1, 0")
            g.e("s_cselect_b32 s4, s46, s44")
            g.e("s_cselect_b32 s5, s47, s45")
            g.e("s_lshr_b32 s51, s17, 2")
            g.e("s_and_b32 s52, s2, 3")
            g.e(f"v_lshrrev_b32 v{vC}, 4, v{vLane}")
            g.e(f"v_mul_u32_u24 v{vC}, 7168, v{vC}")
            g.e(f"v_and_b32 v{vT}, 15, v{vLane}")
            g.e(f"v_lshl_add_u32 v{vC}, v{vT}, 4, v{vC}")
            g.e("s_lshl_b32 s19, s52, 2")
            g.e(f"s_add_u32 s19, s19, s{sWv}")
            g.e(f"s_mul_i32 s19, s19, {64*7168}")
            g.e("s_lshl_b32 s18, s51, 8")
            g.e("s_add_u32 s19, s19, s18")
            g.e("s_cmp_ge_u32 s2, 224")
            g.e(f"s_cselect_b32 s19, {OOB}, s19")
            g.e(f"v_add_u32 v{vC}, s19, v{vC}")
            make_srd(g, 56, 4, 1024 * 7168)
            for l in g.lines[n0:]: st.i(l.strip())
            del g.lines[n0:]
        at.setdefault(T0, []).append(cs_setup)
        for i in range(16):
            def ld(st, bq, i=i):
                def f():
                    st.i(f"s_mov_b32 s33, {i*4*7168}")
                    st.vmop(f"buffer_load_dwordx4 {vr(cdst[i],4)}, v{vC}, s[56:59], s33 offen", ('CS', i))
                bq.append(f)
            at.setdefault(ctile[i], []).append(ld)
    c = dict(P=cf[0], R=cf[1], rate=cf[2], hook_pre=hook_pre, at_tile=at, no_final_vm=is3, name=f'k{which}', RB=RB, CB=CB, NB=D*CB, NA=NA, NS=NS, KT=KT, acc=acc, araw=araw, bfr=bfr, vA=vA, vBl=vBl, vBrd=vBrd,
             srdA=8, srdB=12, sregs=(24, 25), stage=8192, tileB=64 * 2048,
             dma=dma, sWave=sWave, swap=[1, 1], bar_off=0,
             b_imm=lambda kk, cb, q: (2 * kk + q) * 1024 + cb * 512)
    gemm_core(g, c)
    ep = Alloc(araw[8])
    t = ep.get(4)
    if is3:
        for j in range(4):
            g.e(f"v_permlane32_swap_b32 v{res+4*j}, v{res+4*j+2}")
            g.e(f"v_permlane32_swap_b32 v{res+4*j+1}, v{res+4*j+3}")
        g.e("s_nop 1")
    a0 = acc[0][0]
    for d in range(16):
        g.e(f"v_lshlrev_b32 v{t}, 16, v{res+d}")
        g.e(f"v_and_b32 v{t+1}, 0xffff0000, v{res+d}")
        g.e(f"v_add_f32 v{a0+2*d}, v{a0+2*d}, v{t}")
        g.e(f"v_add_f32 v{a0+2*d+1}, v{a0+2*d+1}, v{t+1}")
    out = ep.get(16, 4)
    for d in range(16):
        g.e(f"v_cvt_pk_bf16_f32 v{out+d}, v{a0+2*d}, v{a0+2*d+1}")
    if is3:
        for j in range(4):
            g.e(f"buffer_store_dwordx4 {vr(out+4*j,4)}, v{vH}, s[36:39], 0 offen offset:{j*1024}")
        S = ep.get(2, 2); S2 = ep.get(2, 2)
        g.e(f"v_mov_b32 v{S}, 0")
        g.e(f"v_mov_b32 v{S+1}, 0")
        for d in range(16):
            g.e(f"v_lshlrev_b32 v{t}, 16, v{out+d}")
            g.e(f"v_and_b32 v{t+1}, 0xffff0000, v{out+d}")
            g.e(f"v_add_f32 v{S}, v{S}, v{t}")
            g.e(f"v_fma_f32 v{S+1}, v{t}, v{t}, v{S+1}")
            g.e(f"v_add_f32 v{S}, v{S}, v{t+1}")
            g.e(f"v_fma_f32 v{S+1}, v{t+1}, v{t+1}, v{S+1}")
        g.e(f"v_mov_b32 v{S2}, v{S}")
        g.e(f"v_mov_b32 v{S2+1}, v{S+1}")
        g.e("s_nop 1")
        g.e(f"v_permlane32_swap_b32 v{S}, v{S2}")
        g.e(f"v_permlane32_swap_b32 v{S+1}, v{S2+1}")
        g.e("s_nop 1")
        g.e(f"v_add_f32 v{S}, v{S}, v{S2}")
        g.e(f"v_add_f32 v{S+1}, v{S+1}, v{S2+1}")
        make_srd(g, 44, 6, 256 * 1024, WS_ST)
        g.e(f"v_and_b32 v{t}, 31, v{vLane}")
        g.e(f"v_lshlrev_b32 v{t}, 3, v{t}")
        g.e(f"s_lshl_b32 s16, s{sRbg}, 8")
        g.e(f"s_lshl_b32 s17, s{sNt}, 14")
        g.e("s_add_u32 s16, s16, s17")
        g.e("s_mov_b32 exec_hi, 0")
        g.e(f"buffer_store_dwordx2 {vr(S,2)}, v{t}, s[44:47], s16 offen")
        g.e("s_mov_b32 exec_hi, -1")
        idn = ep.get(4, 4); Dc = ep.get(4, 4); vW = ep.get(); R4 = ep.get(4)
        g.e(f"v_and_b32 v{t}, 15, v{vLane}")
        g.e(f"v_and_b32 v{t+1}, 1, v{vLane}")
        g.e(f"v_lshlrev_b32 v{t+1}, 4, v{t+1}")
        g.e(f"v_mov_b32 v{t+2}, 0x3f80")
        g.e(f"v_lshlrev_b32 v{t+1}, v{t+1}, v{t+2}")
        g.e(f"v_lshrrev_b32 v{t}, 1, v{t}")
        for j in range(4):
            g.e(f"v_cmp_eq_u32 vcc, {j}, v{t}")
            g.e(f"v_cndmask_b32 v{idn+j}, 0, v{t+1}, vcc")
        g.e(f"v_and_b32 v{vW}, 15, v{vLane}")
        g.e(f"v_lshlrev_b32 v{vW}, 5, v{vW}")
        g.e(f"v_bfe_u32 v{t}, v{vLane}, 4, 1")
        g.e(f"v_lshl_add_u32 v{vW}, v{t}, 4, v{vW}")
        g.e(f"s_lshl_b32 s16, s{sWv}, 9")
        g.e(f"s_add_u32 s16, s16, {NS*8192}")
        g.e(f"v_add_u32 v{vW}, s16, v{vW}")
        make_srd(g, 44, 6, 7168 * 16, WS_S)
        for i in range(16):
            g.e(f"s_waitcnt vmcnt({5 + 15 - i})")
            g.e(f"v_mfma_f32_16x16x32_bf16 {vr(Dc,4)}, {vr(idn,4)}, {vr(cdst[i],4)}, {vr(Dc,4) if i else 0}")
        g.e("s_nop 15")
        g.e("s_mov_b32 exec_hi, 0")
        g.e(f"ds_write_b128 v{vW}, {vr(Dc,4)}")
        g.e("s_mov_b32 exec_hi, -1")
        g.e("s_waitcnt lgkmcnt(0)")
        g.e("s_barrier")
        g.e(f"s_cmp_ge_u32 s{sWv}, 2")
        g.e(f"s_cbranch_scc1 {done}" + ("_x" if STAMP else ""))
        g.e(f"v_lshlrev_b32 v{t}, 2, v0")
        g.e(f"v_add_u32 v{t}, {NS*8192}, v{t}")
        for w in range(4): g.e(f"ds_read_b32 v{R4+w}, v{t} offset:{w*512}")
        g.e("s_mul_i32 s19, s50, 3584")
        g.e("s_lshl_b32 s18, s51, 7")
        g.e("s_add_u32 s19, s19, s18")
        g.e("s_lshl_b32 s19, s19, 4")
        g.e("s_lshl_b32 s18, s52, 2")
        g.e("s_add_u32 s19, s19, s18")
        g.e("s_cmp_ge_u32 s2, 224")
        g.e(f"s_cbranch_scc1 {done}" + ("_x" if STAMP else ""))
        g.e(f"v_lshlrev_b32 v{t}, 4, v0")
        g.e("s_waitcnt lgkmcnt(0)")
        g.e(f"v_add_f32 v{R4}, v{R4}, v{R4+1}")
        g.e(f"v_add_f32 v{R4+2}, v{R4+2}, v{R4+3}")
        g.e(f"v_add_f32 v{R4}, v{R4}, v{R4+2}")
        g.e(f"buffer_store_dword v{R4}, v{t}, s[44:47], s19 offen")
    else:
        g.e("s_nop 1")
        for j in range(4):
            g.e(f"v_permlane32_swap_b32 v{out+4*j}, v{out+4*j+2}")
            g.e(f"v_permlane32_swap_b32 v{out+4*j+1}, v{out+4*j+3}")
        g.e("s_nop 1")
        for j in range(4):
            g.e(f"buffer_store_dwordx4 {vr(out+4*j,4)}, v{vR}, s[40:43], 0 offen offset:{j*32}")
    if STAMP:
        g.label(done + "_x")
        stamp(g, 4)
        g.e("s_waitcnt vmcnt(0)")
        stamp(g, 5)
        stamp_flush(g, 8)
    g.label(done)
    g.e("s_endpgm")
    return name, va.n, (256, 256, NS * 8192 + (2048 if is3 else 0))

def k4(g, NA=2, NS=5):
    name = "k4_ffn_kernel"
    kernel_begin(g, name)
    done = "k4_done"
    va = Alloc(4)
    vLane = 2; vT = 3; sWv = 3
    UOFF = 14464; STAGE = 28800
    NA = CFG['k4'][3] if len(CFG['k4']) > 3 else NA
    common_entry(g, 256, vLane, sWv, done)
    g.e("s_load_dwordx4 s[36:39], s[0:1], 32")
    g.e("s_load_dwordx2 s[6:7], s[0:1], 72")
    if PF4: g.e("s_load_dwordx2 s[48:49], s[0:1], 48")
    sMt, sNt = 20, 21
    g.e("s_and_b32 s16, s2, 7")
    g.e("s_lshr_b32 s17, s2, 3")
    g.e("s_and_b32 s18, s16, 1")
    g.e("s_lshl_b32 s18, s18, 2")
    g.e("s_and_b32 s19, s17, 3")
    g.e(f"s_add_u32 s{sMt}, s18, s19")
    g.e("s_lshr_b32 s18, s16, 1")
    g.e("s_lshl_b32 s18, s18, 3")
    g.e("s_lshr_b32 s19, s17, 2")
    g.e(f"s_add_u32 s{sNt}, s18, s19")
    RB, CB, D = 1, 7, 1
    acc = [[va.get(16, 4) for cb in range(CB)]]
    araw = [va.get(4, 4) for _ in range(NA * 4 * RB)]
    bfr = [va.get(4, 4) for _ in range(D * CB)]
    st0 = va.get(16, 4)
    Sv4 = va.get(28, 4)
    tmp = [st0 + i for i in range(3)]
    vA = [va.get()]; vBl = va.get(); vBrd = va.get()
    vD = [va.get() for _ in range(4)]
    vC1 = va.get(); vC2 = va.get(); vI2 = va.get(); vS = va.get(); vSa = va.get()
    sRbg = 22
    g.e(f"s_lshl_b32 s{sRbg}, s{sMt}, 3")
    g.e(f"s_add_u32 s{sRbg}, s{sRbg}, s{sWv}")
    g.e(f"s_mul_i32 s16, s{sRbg}, {HSTR}")
    g.e(f"v_lshlrev_b32 v{vA[0]}, 4, v{vLane}")
    g.e(f"v_add_u32 v{vA[0]}, s16, v{vA[0]}")
    g.e(f"v_lshrrev_b32 v{vT}, 5, v{vLane}")
    g.e(f"v_bfe_u32 v{vBl}, v{vLane}, 2, 2")
    g.e(f"v_lshl_add_u32 v{vT}, v{vT}, 2, v{vBl}")
    g.e(f"v_mul_u32_u24 v{vBl}, 224, v{vT}")
    g.e(f"v_bfe_u32 v{vT}, v{vLane}, 4, 1")
    g.e(f"v_mul_u32_u24 v{vT}, {UOFF}, v{vT}")
    g.e(f"v_add_u32 v{vBl}, v{vBl}, v{vT}")
    g.e(f"v_and_b32 v{vT}, 3, v{vLane}")
    g.e(f"v_lshl_add_u32 v{vBl}, v{vT}, 3, v{vBl}")
    g.e(f"s_lshr_b32 s16, s{sWv}, 1")
    g.e(f"s_mul_i32 s17, s16, {16*7168}")
    g.e(f"s_mul_i32 s18, s{sNt}, 224")
    g.e("s_add_u32 s17, s17, s18")
    for i in range(4):
        g.e(f"v_add_u32 v{tmp[0]}, {64*i}, v{vLane}")
        g.e(f"v_mul_u32_u24 v{tmp[1]}, 4682, v{tmp[0]}")
        g.e(f"v_lshrrev_b32 v{tmp[1]}, 16, v{tmp[1]}")
        g.e(f"v_mul_u32_u24 v{tmp[2]}, 14, v{tmp[1]}")
        g.e(f"v_sub_u32 v{tmp[2]}, v{tmp[0]}, v{tmp[2]}")
        g.e(f"v_mul_u32_u24 v{tmp[1]}, 7168, v{tmp[1]}")
        g.e(f"v_lshl_add_u32 v{tmp[1]}, v{tmp[2]}, 4, v{tmp[1]}")
        g.e(f"v_add_u32 v{vD[i]}, s17, v{tmp[1]}")
    dma = [(vD[i], i * 1024, i == 3) for i in range(4)]
    sWave = 23
    g.e(f"s_mul_i32 s{sWave}, s16, 3584")
    g.e(f"s_and_b32 s18, s{sWv}, 1")
    g.e(f"s_mul_i32 s19, s18, {UOFF}")
    g.e(f"s_add_u32 s{sWave}, s{sWave}, s19")
    g.e("s_waitcnt lgkmcnt(0)")
    g.e("s_cmp_eq_u32 s18, 0")
    g.e("s_cselect_b32 s4, s36, s38")
    g.e("s_cselect_b32 s5, s37, s39")
    make_srd(g, 8, 6, 64 * HSTR, WS_H)
    make_srd(g, 12, 4, 1024 * 7168)
    at = {}
    def late_setup(st):
        n0 = len(g.lines)
        make_srd(g, 40, 6, 256 * 1024, WS_ST)
        make_srd(g, 44, 6, 64 * 224 * 1024, WS_ACT)
        g.e(f"v_and_b32 v{vS}, 31, v{vLane}")
        g.e(f"v_lshlrev_b32 v{vS}, 3, v{vS}")
        g.e(f"v_lshrrev_b32 v{vT}, 5, v{vLane}")
        g.e(f"v_lshl_add_u32 v{vS}, v{vT}, 14, v{vS}")
        g.e(f"s_lshl_b32 s16, s{sRbg}, 8")
        g.e(f"v_add_u32 v{vS}, s16, v{vS}")
        make_srd(g, 56, 6, 7168 * 16, WS_S)
        g.e(f"v_bfe_u32 v{vT}, v{vLane}, 4, 1")
        g.e(f"v_mul_u32_u24 v{vT}, {14336*4}, v{vT}")
        g.e(f"v_and_b32 v{vSa}, 15, v{vLane}")
        g.e(f"v_lshl_add_u32 v{vSa}, v{vSa}, 4, v{vT}")
        g.e(f"s_mul_i32 s16, s{sNt}, {448*4}")
        g.e(f"v_add_u32 v{vSa}, s16, v{vSa}")
        if PF4:
            make_srd(g, 52, 48, 3584 * 2048)
            g.e("s_lshl_b32 s16, s2, 12")
            g.e(f"v_lshl_add_u32 v{vP}, v0, 3, s16")
        for l in g.lines[n0:]: st.i(l.strip())
        del g.lines[n0:]
    if PF4:
        vP = va.get(); vJ = va.get()
        for it in range(8):
            def pf(st, bq, it=it):
                def f():
                    st.i(f"s_mov_b32 s33, {it*MB}")
                    st.vmop(f"buffer_load_dword v{vJ}, v{vP}, s[52:55], s33 offen", ('P', it))
                bq.append(f)
            at.setdefault(2 + it, []).append(pf)
    def ld_stats(st, bq):
        for j in range(8):
            def f(j=j):
                st.i(f"s_mov_b32 s33, {j*32768}")
                st.vmop(f"buffer_load_dwordx2 {vr(st0+2*j,2)}, v{vS}, s[40:43], s33 offen", ('S', j))
            bq.append(f)
        for cb in range(CB):
            bq.append(lambda cb=cb: st.vmop(f"buffer_load_dwordx4 {vr(Sv4+4*cb,4)}, v{vSa}, s[56:59], 0 offen offset:{cb*256}", ('C', cb)))
    at.setdefault(1, []).append(ld_stats)
    C1 = -2.0 * 0.7978845608028654 * LOG2E
    C2 = C1 * 0.044715
    def corr(st, bq):
        st.need('vm', [('S', j) for j in range(8)] + [('C', cb) for cb in range(CB)])
        for j in (8, 4, 2):
            for i in range(j):
                st.i(f"v_add_f32 v{st0+i}, v{st0+i}, v{st0+j+i}")
        st.i(f"v_mov_b32 v{st0+2}, v{st0}")
        st.i(f"v_mov_b32 v{st0+3}, v{st0+1}")
        st.i("s_nop 1")
        st.i(f"v_permlane32_swap_b32 v{st0}, v{st0+2}")
        st.i(f"v_permlane32_swap_b32 v{st0+1}, v{st0+3}")
        st.i("s_nop 1")
        st.i(f"v_add_f32 v{st0}, v{st0}, v{st0+2}")
        st.i(f"v_add_f32 v{st0+1}, v{st0+1}, v{st0+3}")
        st.i(f"v_mul_f32 v{st0}, 0x{f2u(-1/1024):08x}, v{st0}")
        st.i(f"v_mul_f32 v{st0+1}, 0x{f2u(1/1024):08x}, v{st0+1}")
        st.i(f"v_fma_f32 v{st0+1}, -v{st0}, v{st0}, v{st0+1}")
        st.i(f"v_max_f32 v{st0+1}, 0, v{st0+1}")
        st.i(f"v_add_f32 v{vI2}, 0x{f2u(1e-5):08x}, v{st0+1}")
        st.i(f"v_rsq_f32 v{st0+1}, v{vI2}")
        Bf = st0 + 4; Af = [st0 + 8, st0 + 12]
        st.i(f"v_cmp_gt_u32 vcc, 32, v{vLane}")
        st.i(f"v_cndmask_b32 v{st0}, 0, v{st0}, vcc")
        st.i(f"v_cvt_pk_bf16_f32 v{Bf+1}, v{st0}, 0")
        st.i(f"v_lshlrev_b32 v{st0+2}, 16, v{Bf+1}")
        st.i(f"v_sub_f32 v{st0+2}, v{st0}, v{st0+2}")
        st.i(f"v_cvt_pk_bf16_f32 v{Bf}, v{st0}, v{st0+2}")
        st.i(f"v_mov_b32 v{Bf+2}, 0")
        st.i(f"v_mov_b32 v{Bf+3}, 0")
        st.i(f"v_mul_f32 v{vC1}, 0x{f2u(C1):08x}, v{st0+1}")
        st.i(f"v_mul_f32 v{vC2}, v{st0+1}, v{st0+1}")
        st.i(f"v_mul_f32 v{vC2}, v{vC2}, v{st0+1}")
        st.i(f"v_mul_f32 v{vC2}, 0x{f2u(C2):08x}, v{vC2}")
        for a_ in Af:
            st.i(f"v_mov_b32 v{a_+2}, 0")
            st.i(f"v_mov_b32 v{a_+3}, 0")
        for cb in range(CB):
            a_ = Af[cb & 1]
            S_ = Sv4 + 4 * cb
            st.i(f"v_add_f32 v{S_}, v{S_}, v{S_+1}")
            st.i(f"v_add_f32 v{S_+2}, v{S_+2}, v{S_+3}")
            st.i(f"v_add_f32 v{S_}, v{S_}, v{S_+2}")
            st.i(f"v_cvt_pk_bf16_f32 v{a_}, v{S_}, v{S_}")
            st.i(f"v_and_b32 v{st0+2}, 0xffff0000, v{a_}")
            st.i(f"v_sub_f32 v{st0+2}, v{S_}, v{st0+2}")
            st.i(f"v_cvt_pk_bf16_f32 v{a_+1}, v{st0+2}, 0")
            st.i("s_nop 1")
            st.i(f"v_mfma_f32_32x32x16_bf16 {vr(acc[0][cb],16)}, {vr(a_,4)}, {vr(Bf,4)}, {vr(acc[0][cb],16)}")
    at.setdefault(8, []).append(corr)
    c = dict(P=CFG['k4'][0], R=CFG['k4'][1], rate=CFG['k4'][2], name='k4', RB=RB, CB=CB, NB=D*CB, NA=NA, NS=NS, KT=16, acc=acc, araw=araw, bfr=bfr, vA=vA, vBl=vBl, vBrd=vBrd,
             hook_pre=late_setup, at_tile=at,
             srdA=8, srdB=12, sregs=(24, 25), stage=STAGE, tileB=64 * 7168,
             dma=dma, sWave=sWave, swap=[1] * 7,
             b_imm=lambda kk, cb, q: (16 * kk + 8 * q) * 224 + cb * 32)
    gemm_core(g, c)
    ep = Alloc(araw[0])
    T = ep.get(8); O = [ep.get(4, 4) for _ in range(2)]
    vO = ep.get()
    g.e(f"s_mul_i32 s18, s{sRbg}, 224")
    g.e(f"s_mul_i32 s19, s{sNt}, 7")
    g.e("s_add_u32 s18, s18, s19")
    g.e("s_lshl_b32 s18, s18, 10")
    g.e(f"v_lshlrev_b32 v{vO}, 4, v{vLane}")
    g.e(f"v_add_u32 v{vO}, s18, v{vO}")
    g.e("s_mov_b32 s19, 4096")
    for cb in range(CB):
        a = acc[0][cb]
        for i in range(8): g.e(f"v_mul_f32 v{T+i}, v{a+i}, v{a+i}")
        for i in range(8): g.e(f"v_fma_f32 v{T+i}, v{T+i}, v{vC2}, v{vC1}")
        for i in range(8): g.e(f"v_mul_f32 v{T+i}, v{T+i}, v{a+i}")
        for i in range(8): g.e(f"v_exp_f32 v{T+i}, v{T+i}")
        for i in range(8): g.e(f"v_mul_f32 v{a+i}, v{a+i}, v{a+8+i}")
        for i in range(8): g.e(f"v_fma_f32 v{T+i}, v{T+i}, v{vI2}, v{vI2}")
        for i in range(8): g.e(f"v_rcp_f32 v{T+i}, v{T+i}")
        g.e("s_nop 0")
        for i in range(8): g.e(f"v_mul_f32 v{a+i}, v{a+i}, v{T+i}")
        o = O[cb & 1]
        for i in range(4): g.e(f"v_cvt_pk_bf16_f32 v{o+i}, v{a+2*i}, v{a+2*i+1}")
        if cb < 4: g.e(f"buffer_store_dwordx4 {vr(o,4)}, v{vO}, s[44:47], 0 offen offset:{cb*1024}")
        else: g.e(f"buffer_store_dwordx4 {vr(o,4)}, v{vO}, s[44:47], s19 offen offset:{(cb-4)*1024}")
    if STAMP:
        g.label(done + "_x")
        stamp(g, 4)
        g.e("s_waitcnt vmcnt(0)")
        stamp(g, 5)
        stamp_flush(g, 8)
    g.label(done)
    g.e("s_endpgm")
    return name, va.n, (256, 512, NS * STAGE)

def main(out):
    g = G()
    ks = []
    ks.append(k0(g))
    ks.append(k1(g))
    ks.append(k2(g))
    ks.append(k35(g, 3))
    ks.append(k4(g))
    ks.append(k35(g, 5))
    head = []
    for name, nv, (grid, blk, lds) in ks:
        head.append(f"; @launch kernel={name} grid=({grid},1,1) block=({blk},1,1) lds={lds}")
    head.append('.amdgcn_target "amdgcn-amd-amdhsa--gfx950"')
    head.append(".text")
    txt = "\n".join(head) + "\n" + g.text()
    txt += '.section .rodata,"a"\n'
    for name, nv, _ in ks:
        txt += ".p2align 6\n" + kernel_desc(name, nv)
    open(out, "w").write(txt)
    for name, nv, l in ks: print(name, "vgpr", nv, l)

if __name__ == "__main__":
    main(sys.argv[1] if len(sys.argv) > 1 else f"cdna_kernels/{NAME}.s")
```

```python
import sys, struct

NAME = "sequential_preLN__linear_attn_block__geglu_ffn__prompt"
MB = 1 << 20
WS_XN = 0 * MB
WS_PQ = 8 * MB
WS_KVP = 12 * MB
WS_ZP = 14 * MB
WS_O = 16 * MB
WS_H = 20 * MB
WS_ST = 26 * MB
WS_S = 27 * MB
WS_ACT = 32 * MB
WS_BYTES = 48 * MB
OOB = 0x7f000000
import os
HSTR = int(os.environ.get('GHSTR', '65536'))

def f2u(x):
    return struct.unpack("<I", struct.pack("<f", x))[0]

GSTK = os.environ.get("GSTK", "012345")
GSTM = os.environ.get("GSTM", "sc1")
GLM = dict(kv.split(":") for kv in os.environ.get("GLM", "").split(";") if kv)
class G:
    def __init__(self):
        self.cur = "k?"
        self.lines = []
        self.uid = 0
    def e(self, s):
        if s.startswith("buffer_store_dwordx4") and self.cur[1] in GSTK: s += " " + GSTM
        if s.startswith("buffer_load") and GLM:
            k = self.cur[:2]
            if s.endswith(" lds"): tag = k + "b"
            elif k == "k0": tag = "k0x" if "dwordx4" in s else "k0p"
            elif k == "k1": tag = "k1a" if "dwordx4" in s else "k1p"
            elif k == "k2": tag = "k2a"
            elif k == "k3": tag = "k3c" if "s[56:59]" in s else ("k3r" if "s[40:43]" in s else "k3a")
            elif k == "k4": tag = "k4p" if "s[52:55]" in s else ("k4a" if "s[8:11]" in s else "k4s")
            else: tag = "k5r" if "s[36:39]" in s else "k5a"
            if tag in GLM:
                if s.endswith(" lds"): s = s[:-4] + " " + GLM[tag] + " lds"
                else: s += " " + GLM[tag]
        self.lines.append("    " + s)
    def label(self, s):
        self.lines.append(s + ":")
    def raw(self, s):
        self.lines.append(s)
    def newlabel(self, p="L"):
        self.uid += 1
        return f"{p}_{self.uid}"
    def text(self):
        return "\n".join(self.lines) + "\n"

def vr(b, n=1):
    return f"v{b}" if n == 1 else f"v[{b}:{b+n-1}]"
def sr(b, n=1):
    return f"s{b}" if n == 1 else f"s[{b}:{b+n-1}]"

class Alloc:
    def __init__(self, start=0, limit=256):
        self.n = start; self.limit = limit
    def get(self, cnt=1, align=1):
        self.n = (self.n + align - 1) // align * align
        b = self.n; self.n += cnt
        assert self.n <= self.limit, f"out of regs {self.n}"
        return b

def kernel_begin(g, name):
    g.cur = name
    g.raw(f".globl {name}")
    g.raw(".p2align 8")
    g.raw(f".type {name},@function")
    g.label(name)

def kernel_desc(name, nv, ns=96):
    na = 0
    if isinstance(nv, tuple): nv, na = nv
    nv = max(nv, 8)
    acc = (nv + 3) // 4 * 4
    if na: nv = acc + na
    return f""".amdhsa_kernel {name}
  .amdhsa_next_free_vgpr {nv}
  .amdhsa_next_free_sgpr {ns}
  .amdhsa_accum_offset {acc}
  .amdhsa_group_segment_fixed_size 0
  .amdhsa_kernarg_size 80
  .amdhsa_user_sgpr_count 2
  .amdhsa_user_sgpr_kernarg_segment_ptr 1
  .amdhsa_system_sgpr_workgroup_id_x 1
.end_amdhsa_kernel
"""

import os
NOPF = os.environ.get("GNOPF", "")
PF = "0" not in NOPF; PF1 = "1" not in NOPF; PF4 = "4" not in NOPF
PFS = int(os.environ.get("GPFS", "6"))
CFG = dict(k1=(2, 16, 2), k3=(2, 16, 2), k4=(2, 16, 2), k5=(2, 56, 2))
for kv in os.environ.get("GCFG", "").split(";"):
    if kv:
        k_, v_ = kv.split("="); CFG[k_] = tuple(int(x) for x in v_.split(","))
STAMP = os.environ.get("GSTAMP", "") != ""
def stamp(g, i):
    if not STAMP: return
    g.e(f"s_memtime s[{60+2*i}:{61+2*i}]")
    g.e("s_waitcnt lgkmcnt(0)")
def stamp_flush(g, n):
    if not STAMP: return
    L = g.newlabel("Lst")
    g.e("s_cmp_lg_u32 s2, 5")
    g.e(f"s_cbranch_scc1 {L}")
    g.e("s_mov_b64 exec, -1")
    g.e("s_load_dwordx2 s[80:81], s[0:1], 64")
    g.e("s_waitcnt lgkmcnt(0)")
    g.e("s_mov_b32 s82, 256")
    g.e("s_mov_b32 s83, 0x00020000")
    g.e("s_lshl_b32 s84, s3, 5")
    g.e("v_mov_b32 v0, s84")
    for i in range(n):
        g.e(f"s_sub_u32 s85, s{60+2*i}, s60")
        g.e("v_mov_b32 v1, s85")
        g.e(f"buffer_store_dword v1, v0, s[80:83], 0 offen offset:{4*i}")
    g.label(L)

def make_srd(g, d, base, nbytes, add=0):
    if add:
        g.e(f"s_add_u32 s{d}, s{base}, {add}")
        g.e(f"s_addc_u32 s{d+1}, s{base+1}, 0")
    else:
        g.e(f"s_mov_b32 s{d}, s{base}")
        g.e(f"s_mov_b32 s{d+1}, s{base+1}")
    g.e(f"s_mov_b32 s{d+2}, {nbytes}")
    g.e(f"s_mov_b32 s{d+3}, 0x00020000")

import os
DBG = set(os.environ.get("GDBG", "").split(","))
class Stream:
    def __init__(self):
        self.items = []
        self.vm = []; self.lg = []
        self.vm_done = 0; self.lg_done = 0
    def i(self, text):
        self.items.append(('i', text))
    def vmop(self, text, oid):
        if len(self.vm) - self.vm_done >= 60:
            self.items.append(['w', 'vm', 52]); self.vm_done = len(self.vm) - 52
        self.items.append(('i', text)); self.vm.append(oid)
    def lgop(self, text, oid):
        self.items.append(('i', text)); self.lg.append(oid)
    def need(self, kind, oids):
        if not oids: return
        lst = self.vm if kind == 'vm' else self.lg
        done = self.vm_done if kind == 'vm' else self.lg_done
        idx = max(lst.index(o) for o in oids)
        if idx < done:
            self.items.append(['w', kind, None]); return
        n = len(lst) - 1 - idx
        cap = 63 if kind == 'vm' else 15
        n = min(n, cap)
        self.items.append(['w', kind, n])
        if kind == 'vm': self.vm_done = len(lst) - n
        else: self.lg_done = len(lst) - n

def gemm_core(g, c):
    MF = c.get('MF', 32)
    SPT = 4 if MF == 32 else 2
    AW = 16 if MF == 32 else 4
    op = "v_mfma_f32_32x32x16_bf16" if MF == 32 else "v_mfma_f32_16x16x32_bf16"
    RB, CB, NB, NA, NS, KT = c['RB'], c['CB'], c['NB'], c['NA'], c['NS'], c['KT']
    acc = c['acc']; araw = c['araw']; bfr = c['bfr']
    vA = c['vA']; vBl = c['vBl']; vBrd = c['vBrd']
    srdA = c['srdA']; srdB = c['srdB']
    sAe, sBe = c['sregs']
    stage = c['stage']; tileB = c['tileB']
    dma = c['dma']
    sWave = c['sWave']
    swap = c['swap']; b_imm = c['b_imm']
    bar_off = c.get('bar_off', 1)
    PB = NS - 1
    P = c.get('P', 2)
    rate = c.get('rate', 2)
    FT = SPT * CB
    assert NB <= FT
    cur = {'A': None, 'B': None}
    bq = []
    lag = c.get('lag', [0] * CB)
    dlag = c.get('dlag', [0] * len(dma))
    S = max(lag); KTT = KT + S
    dlook = c.get('dlook', [PB] * len(dma))
    Tl = c.get('Tl', KTT)
    nxt = [max(P, min(PB, dlook[i])) for i in range(len(dma))]
    afmt = (lambda b: f"a[{b}:{b+3}]") if c.get('a_in_acc') else (lambda b: vr(b, 4))
    def fvalid(f): return 0 <= f // FT - lag[f % CB] < KT
    def dvalid(tt): return [('D', tt, i) for i in range(len(dma)) if 0 <= tt - dlag[i] < KT]

    def a_reg(t, kk, rb): return araw[((t % NA) * SPT + kk) * RB + rb]
    def b_reg(f): return bfr[f % NB]
    def a_const(st, tt, kk, rb):
        if tt >= KT: return
        if cur['A'] != tt:
            st.i(f"s_mov_b32 s{sAe}, {tt*4096}"); cur['A'] = tt
        st.vmop(f"buffer_load_dwordx4 {afmt(a_reg(tt,kk,rb))}, v{vA[rb]}, {sr(srdA,4)}, s{sAe} offen offset:{kk*(4096//SPT)}", ('A', tt, kk, rb))
    def d_const(st, tt, i):
        src = tt - dlag[i]
        if not 0 <= src < KT: return
        vo, lc, half = dma[i]
        if cur['B'] != src:
            st.i(f"s_mov_b32 s{sBe}, {src*tileB}"); cur['B'] = src
        st.i(f"s_add_u32 m0, s{sWave}, {(tt % NS) * stage + lc}")
        if half: st.i("s_mov_b32 exec_hi, 0")
        else: st.i("s_nop 0")
        st.vmop(f"buffer_load_dwordx4 v{vo}, {sr(srdB,4)}, s{sBe} offen lds", ('D', tt, i))
        if half: st.i("s_mov_b32 exec_hi, -1")
    def issue_reads(st, f):
        if not fvalid(f): return
        s_, cb = divmod(f, CB)
        for q in range(2):
            st.lgop(f"ds_read_b64_tr_b16 {vr(b_reg(f)+2*q,2)}, v{vBrd} offset:{b_imm(s_ % SPT, cb, q)}", ('R', f, q))

    def gen_tile(st, t):
        for fn in c.get('at_tile', {}).get(t, []): fn(st, bq)
        fbar = (t + 1) * FT - NB + bar_off
        deferred = []
        for kk in range(SPT):
            s = SPT * t + kk
            if s >= 1:
                pt, pk = divmod(s - 1, SPT)
                for rb in range(RB):
                    if pt >= S: bq.append(lambda tgt=pt - S + NA, pk=pk, rb=rb: a_const(st, tgt, pk, rb))
            for cb in range(CB):
                f = s * CB + cb
                if fvalid(f):
                    td = t - lag[cb]
                    st.need('lg', [('R', f, 0), ('R', f, 1)])
                    if cb == 0 or lag[cb] != lag[cb - 1]:
                        st.need('vm', [('A', td, kk, rb) for rb in range(RB)])
                    for rb in range(RB):
                        a = afmt(a_reg(td, kk, rb)); b = vr(b_reg(f), 4)
                        x, y = (b, a) if swap[cb] else (a, b)
                        st.i(f"{op} {vr(acc[rb][cb],AW)}, {x}, {y}, {vr(acc[rb][cb],AW) if (td or kk or cb in c.get('preinit', ())) else 0}")
                if f == fbar and t < KTT - 1:
                    st.need('vm', dvalid(t + 1))
                    st.i("s_barrier")
                    st.i(f"v_add_u32 v{vBrd}, {((t + 1) % NS) * stage}, v{vBl}")
                    for tt in range(t + 1, t + PB + 1):
                        for i in range(len(dma)):
                            if nxt[i] == tt and tt <= t + (PB if t >= Tl else min(PB, dlook[i])):
                                bq.append(lambda tt=tt, i=i: d_const(st, tt, i))
                                nxt[i] += 1
                    for df in deferred: issue_reads(st, df)
                    deferred = []
                if f + NB >= (t + 1) * FT and f < fbar: deferred.append(f + NB)
                else: issue_reads(st, f + NB)
                for _ in range(rate):
                    if bq: bq.pop(0)()
                if c.get('slot_hook'): c['slot_hook'](st, t, kk, cb)

    st = Stream()
    for tt in range(P):
        for i in range(len(dma)): d_const(st, tt, i)
        for kk in range(SPT):
            for rb in range(RB): a_const(st, tt, kk, rb)
    for tt in range(P, max(PB, NA)):
        for i in range(len(dma)):
            if tt < nxt[i]: bq.append(lambda tt=tt, i=i: d_const(st, tt, i))
        if tt < NA:
            for kk in range(SPT):
                for rb in range(RB): bq.append(lambda tt=tt, kk=kk, rb=rb: a_const(st, tt, kk, rb))
    if c.get('hook_pre'): c['hook_pre'](st)
    if STAMP: st.i("s_memtime s[72:73]"); st.i("s_waitcnt lgkmcnt(0)")
    st.need('vm', dvalid(0))
    st.i("s_barrier")
    if STAMP: st.i("s_memtime s[74:75]"); st.i("s_waitcnt lgkmcnt(0)")
    st.i(f"v_mov_b32 v{vBrd}, v{vBl}")
    for f in range(NB): issue_reads(st, f)
    n_pro = len(st.items)
    for t in range(KTT): gen_tile(st, t)
    while bq: bq.pop(0)()
    c['st'] = st
    dbg = DBG if c.get('name') in DBG else set()
    def out(items, loop=False):
        for it in items:
            if it[0] == 'i':
                t_ = it[1]
                if loop:
                    if 'nodma' in dbg and t_.endswith('lds'): continue
                    if 'noaload' in dbg and t_.startswith('buffer_load') and not t_.endswith('lds'): continue
                    if 'nobar' in dbg and t_ == 's_barrier': continue
                    if 'nomfma' in dbg and t_.startswith('v_mfma'): continue
                    if 'noread' in dbg and t_.startswith('ds_read'): continue
                g.e(it[1])
            elif it[2] is not None:
                g.e(f"s_waitcnt {'vmcnt' if it[1]=='vm' else 'lgkmcnt'}({it[2]})")
    c['nbar'] = sum(1 for it in st.items if it[0] == 'i' and it[1] == 's_barrier')
    out(st.items[:n_pro])
    stamp(g, 1)
    out(st.items[n_pro:], True)
    stamp(g, 2)
    g.e("s_waitcnt lgkmcnt(0)" if c.get('no_final_vm') else "s_waitcnt vmcnt(0) lgkmcnt(0)")
    g.e("s_nop 15")
    stamp(g, 3)

LOG2E = 1.4426950408889634

def common_entry(g, nwg, vLane, sWv, done):
    g.e(f"s_cmp_ge_u32 s2, {nwg}")
    g.e(f"s_cbranch_scc1 {done}")
    g.e(f"v_and_b32 v{vLane}, 63, v0")
    g.e(f"v_lshrrev_b32 v1, 6, v0")
    g.e("s_nop 0")
    g.e(f"v_readfirstlane_b32 s{sWv}, v1")
    stamp(g, 0)

def emit_vBl_std(g, vBl, vLane, t):
    g.e(f"v_lshrrev_b32 v{vBl}, 5, v{vLane}")
    g.e(f"v_lshlrev_b32 v{vBl}, 8, v{vBl}")
    g.e(f"v_bfe_u32 v{t}, v{vLane}, 2, 2")
    g.e(f"v_lshl_add_u32 v{vBl}, v{t}, 6, v{vBl}")
    g.e(f"v_bfe_u32 v{t}, v{vLane}, 4, 1")
    g.e(f"v_lshl_add_u32 v{vBl}, v{t}, 5, v{vBl}")
    g.e(f"v_and_b32 v{t}, 3, v{vLane}")
    g.e(f"v_lshl_add_u32 v{vBl}, v{t}, 3, v{vBl}")

def emit_dma_lane_std(g, vD, vLane, t, ldb, sT):
    g.e(f"v_bfe_u32 v{t}, v{vLane}, 2, 3")
    g.e(f"s_mov_b32 s{sT}, {ldb}")
    g.e(f"v_mul_lo_u32 v{vD}, v{t}, s{sT}")
    g.e(f"v_lshrrev_b32 v{t}, 5, v{vLane}")
    g.e(f"v_lshl_add_u32 v{vD}, v{t}, 6, v{vD}")
    g.e(f"v_and_b32 v{t}, 3, v{vLane}")
    g.e(f"v_lshl_add_u32 v{vD}, v{t}, 4, v{vD}")

def zero_regs(g, base, n):
    for i in range(n): g.e(f"v_mov_b32 v{base+i}, 0")

def k0(g):
    name = "k0_ln_kernel"
    kernel_begin(g, name)
    done = "k0_done"
    sWv = 3
    X0 = int(os.environ.get("GX0", "0"))
    common_entry(g, 256 + X0, 2, sWv, done)
    if X0:
        g.e("s_cmp_ge_u32 s2, 256")
        g.e("s_cbranch_scc1 k0_pf")
    g.e("s_load_dwordx4 s[4:7], s[0:1], 0")
    g.e("s_load_dwordx2 s[28:29], s[0:1], 72")
    g.e("v_and_b32 v3, 7, v2")
    g.e("v_lshrrev_b32 v4, 3, v2")
    g.e("s_lshl_b32 s16, s2, 3")
    g.e("v_add_u32 v5, s16, v3")
    g.e("v_lshlrev_b32 v5, 11, v5")
    g.e("s_lshl_b32 s17, s3, 4")
    g.e("v_add_u32 v6, s17, v4")
    g.e("v_lshl_add_u32 v5, v6, 5, v5")
    g.e("s_waitcnt lgkmcnt(0)")
    make_srd(g, 8, 4, 4 * MB)
    make_srd(g, 12, 28, 4 * MB, WS_XN)
    g.e("buffer_load_dwordx4 v[8:11], v5, s[8:11], 0 offen")
    g.e("buffer_load_dwordx4 v[12:15], v5, s[8:11], 0 offen offset:16")
    g.e("buffer_load_dwordx4 v[16:19], v5, s[8:11], 0 offen offset:256")
    g.e("buffer_load_dwordx4 v[20:23], v5, s[8:11], 0 offen offset:272")
    if PF:
        make_srd(g, 24, 6, 1024 * 6144)
        g.e(f"s_lshl_b32 s22, s2, {PFS+8}")
        g.e(f"v_lshl_add_u32 v28, v0, {PFS}, s22")
        g.e(f"s_mov_b32 s23, {4*MB}")
        g.e("buffer_load_dword v29, v28, s[24:27], 0 offen")
        g.e(f"buffer_load_dword v30, v28, s[24:27], s23 offen" if PFS == 6 else "s_nop 0")
    g.e("s_lshr_b32 s18, s2, 2")
    g.e("s_lshl_b32 s18, s18, 16")
    g.e("s_and_b32 s19, s2, 3")
    g.e("s_lshl_b32 s19, s19, 7")
    g.e("s_add_u32 s18, s18, s19")
    g.e("v_lshlrev_b32 v7, 10, v6")
    g.e("v_lshl_add_u32 v7, v3, 4, v7")
    g.e("v_add_u32 v7, s18, v7")
    g.e("v_mov_b32 v24, 0")
    g.e("v_mov_b32 v25, 0")
    g.e(f"s_waitcnt vmcnt({(2 if PFS == 6 else 1) if PF else 0})")
    for d in range(16):
        g.e(f"v_lshlrev_b32 v{32+2*d}, 16, v{8+d}")
        g.e(f"v_and_b32 v{33+2*d}, 0xffff0000, v{8+d}")
    for i in range(32):
        g.e(f"v_add_f32 v24, v24, v{32+i}")
        g.e(f"v_fma_f32 v25, v{32+i}, v{32+i}, v25")
    g.e("s_nop 1")
    g.e("v_add_f32_dpp v24, v24, v24 row_ror:8 row_mask:0xf bank_mask:0xf")
    g.e("v_add_f32_dpp v25, v25, v25 row_ror:8 row_mask:0xf bank_mask:0xf")
    for op in ("v_permlane16_swap_b32", "v_permlane32_swap_b32"):
        g.e("v_mov_b32 v26, v24")
        g.e("v_mov_b32 v27, v25")
        g.e("s_nop 1")
        g.e(f"{op} v24, v26")
        g.e(f"{op} v25, v27")
        g.e("s_nop 1")
        g.e("v_add_f32 v24, v24, v26")
        g.e("v_add_f32 v25, v25, v27")
    g.e("s_lshl_b32 s20, s3, 6")
    g.e("v_lshlrev_b32 v26, 3, v3")
    g.e("v_add_u32 v27, s20, v26")
    g.e("ds_write_b64 v27, v[24:25]")
    g.e("s_waitcnt lgkmcnt(0)")
    g.e("s_barrier")
    g.e("ds_read_b64 v[8:9], v26")
    g.e("ds_read_b64 v[10:11], v26 offset:64")
    g.e("ds_read_b64 v[12:13], v26 offset:128")
    g.e("ds_read_b64 v[14:15], v26 offset:192")
    g.e("s_waitcnt lgkmcnt(0)")
    g.e("v_add_f32 v8, v8, v10")
    g.e("v_add_f32 v9, v9, v11")
    g.e("v_add_f32 v12, v12, v14")
    g.e("v_add_f32 v13, v13, v15")
    g.e("v_add_f32 v8, v8, v12")
    g.e("v_add_f32 v9, v9, v13")
    g.e(f"v_mul_f32 v8, 0x{f2u(1/1024):08x}, v8")
    g.e(f"v_mul_f32 v9, 0x{f2u(1/1024):08x}, v9")
    g.e("v_fma_f32 v9, -v8, v8, v9")
    g.e("v_max_f32 v9, 0, v9")
    g.e(f"v_add_f32 v9, 0x{f2u(1e-5):08x}, v9")
    g.e("v_rsq_f32 v9, v9")
    g.e("s_nop 0")
    g.e("v_mul_f32 v8, v8, v9")
    for i in range(32):
        g.e(f"v_fma_f32 v{32+i}, v{32+i}, v9, -v8")
    for grp in range(2):
        b = 32 + 16 * grp; o = 8 + 8 * grp
        for k, e in enumerate((0, 2, 8, 10, 4, 6, 12, 14)):
            g.e(f"v_cvt_pk_bf16_f32 v{o+k}, v{b+e}, v{b+e+1}")
    g.e("s_mov_b32 s21, 8192")
    g.e("buffer_store_dwordx4 v[8:11], v7, s[12:15], 0 offen")
    g.e("buffer_store_dwordx4 v[12:15], v7, s[12:15], 0 offen offset:512")
    g.e("buffer_store_dwordx4 v[16:19], v7, s[12:15], s21 offen")
    g.e("buffer_store_dwordx4 v[20:23], v7, s[12:15], s21 offen offset:512")
    g.e("s_waitcnt vmcnt(0)")
    if STAMP:
        g.label(done + "_x")
        stamp(g, 4)
        g.e("s_waitcnt vmcnt(0)")
        stamp(g, 5)
        stamp_flush(g, 8)
    g.label(done)
    g.e("s_endpgm")
    if X0:
        g.label("k0_pf")
        g.e("s_load_dwordx4 s[8:11], s[0:1], 32")
        g.e("s_sub_u32 s16, s2, 256")
        per = 7168 * 1024 // X0
        g.e(f"s_mul_i32 s16, s16, {per}")
        g.e("v_lshl_add_u32 v4, v0, 6, s16")
        g.e("s_waitcnt lgkmcnt(0)")
        make_srd(g, 12, 8, 1024 * 7168)
        make_srd(g, 20, 10, 1024 * 7168)
        for i in range(-(-per // 16384)):
            g.e(f"s_mov_b32 s17, {i*16384}")
            g.e("buffer_load_dword v5, v4, s[12:15], s17 offen")
            g.e("buffer_load_dword v6, v4, s[20:23], s17 offen")
        g.e("s_waitcnt vmcnt(0)")
        g.e("s_endpgm")
    return name, 64, (256 + X0, 256, 256)

def emit_phi(g, r, t):
    g.e(f"v_mul_f32 v{t}, 0x{f2u(LOG2E):08x}, v{r}")
    g.e(f"v_min_f32 v{t}, 0, v{t}")
    g.e(f"v_exp_f32 v{t}, v{t}")
    g.e(f"v_add_f32 v{r}, 0x{f2u(1e-6):08x}, v{r}")
    g.e(f"v_max_f32 v{r}, 0x{f2u(1e-6):08x}, v{r}")
    g.e(f"v_add_f32 v{r}, v{r}, v{t}")

def k1(g, NA=4, NS=5):
    name = "k1_qkv_kernel"
    kernel_begin(g, name)
    done = "k1_done"
    va = Alloc(4)
    vLane = 2; vT = 3
    sWv = 3
    common_entry(g, 256, vLane, sWv, done)
    g.e("s_load_dwordx2 s[4:5], s[0:1], 8")
    g.e("s_load_dwordx2 s[6:7], s[0:1], 72")
    if PF1:
        g.e(f"s_cmp_eq_u32 s{sWv}, 4")
        g.e("s_cbranch_scc1 k1_pf")
    sMt, sJ = 20, 21
    g.e("s_and_b32 s16, s2, 7")
    g.e("s_lshr_b32 s17, s2, 3")
    g.e("s_and_b32 s18, s16, 1")
    g.e("s_lshl_b32 s18, s18, 3")
    g.e("s_and_b32 s19, s17, 7")
    g.e(f"s_add_u32 s{sMt}, s18, s19")
    g.e("s_lshr_b32 s18, s16, 1")
    g.e("s_lshl_b32 s18, s18, 2")
    g.e("s_lshr_b32 s19, s17, 3")
    g.e(f"s_add_u32 s{sJ}, s18, s19")
    RB, CB, D = 1, 6, 1
    acc = [[va.get(16, 4) for cb in range(CB)]]
    araw = [va.get(4, 4) for _ in range(NA * 4 * RB)]
    bfr = [va.get(4, 4) for _ in range(D * CB)]
    vA = [va.get()]; vBl = va.get(); vBrd = va.get()
    vD = [va.get() for _ in range(6)]
    sRbg = 22
    g.e(f"s_lshl_b32 s{sRbg}, s{sMt}, 2")
    g.e(f"s_add_u32 s{sRbg}, s{sRbg}, s{sWv}")
    g.e(f"s_lshl_b32 s16, s{sRbg}, 16")
    g.e(f"v_lshlrev_b32 v{vA[0]}, 4, v{vLane}")
    g.e(f"v_add_u32 v{vA[0]}, s16, v{vA[0]}")
    emit_vBl_std(g, vBl, vLane, vT)
    emit_dma_lane_std(g, vD[0], vLane, vT, 6144, 16)
    g.e(f"s_mul_i32 s16, s{sWv}, {16*6144}")
    g.e(f"s_lshl_b32 s17, s{sJ}, 7")
    g.e("s_add_u32 s16, s16, s17")
    g.e(f"v_add_u32 v{vD[0]}, s16, v{vD[0]}")
    dma = []
    for kbs in range(2):
        for seg in range(3):
            i = kbs * 3 + seg
            if i: g.e(f"v_add_u32 v{vD[i]}, {kbs*8*6144 + seg*2048}, v{vD[0]}")
            dma.append((vD[i], (kbs * 3 + seg) * 1024, False))
    sWave = 23
    g.e(f"s_mul_i32 s{sWave}, s{sWv}, 6144")
    g.e("s_waitcnt lgkmcnt(0)")
    make_srd(g, 8, 6, 4 * MB, WS_XN)
    make_srd(g, 12, 4, 1024 * 6144)
    pfc = {}
    c = dict(pfc, P=CFG['k1'][0], R=CFG['k1'][1], rate=CFG['k1'][2], name='k1', RB=RB, CB=CB, NB=D*CB, NA=NA, NS=NS, KT=16, acc=acc, araw=araw, bfr=bfr, vA=vA, vBl=vBl, vBrd=vBrd,
             srdA=8, srdB=12, sregs=(24, 25), stage=24576, tileB=64 * 6144,
             dma=dma, sWave=sWave, swap=[1, 1, 0, 0, 0, 0],
             b_imm=lambda kk, cb, q: ((2 * kk + q) * 3 + (cb >> 1)) * 1024 + (cb & 1) * 512)
    gemm_core(g, c)
    make_srd(g, 36, 6, 4 * MB, WS_PQ)
    make_srd(g, 40, 6, 2 * MB, WS_KVP)
    make_srd(g, 44, 6, 64 * 1024, WS_ZP)
    ep = Alloc(araw[0])
    t0 = ep.get(4)
    for cb in range(4):
        for i in range(16):
            emit_phi(g, acc[0][cb] + i, t0 + (i & 3))
    pk = [ep.get(8, 4) for _ in range(6)]
    for cb in range(6):
        for i in range(8):
            g.e(f"v_cvt_pk_bf16_f32 v{pk[cb]+i}, v{acc[0][cb]+2*i}, v{acc[0][cb]+2*i+1}")
    g.e(f"s_lshl_b32 s16, s{sJ}, 12")
    for cb in range(2):
        for s in range(2):
            g.e(f"buffer_store_dwordx4 {vr(pk[cb]+4*s,4)}, v{vA[0]}, s[36:39], s16 offen offset:{(2*cb+s)*1024}")
    ones = ep.get(4, 4)
    for i in range(4): g.e(f"v_mov_b32 v{ones+i}, 0x3f803f80")
    kvz = [acc[0][0], acc[0][1], acc[0][2], acc[0][3]]
    zero_regs(g, kvz[0], 64)
    g.e("s_nop 1")
    for hh in range(2):
        for s in range(2):
            g.e(f"v_mfma_f32_32x32x16_bf16 {vr(kvz[hh],16)}, {vr(pk[2+hh]+4*s,4)}, {vr(pk[4+hh]+4*s,4)}, {vr(kvz[hh],16)}")
            g.e(f"v_mfma_f32_32x32x16_bf16 {vr(kvz[2+hh],16)}, {vr(pk[2+hh]+4*s,4)}, {vr(ones,4)}, {vr(kvz[2+hh],16)}")
    g.e("s_barrier")
    g.e("s_nop 15")
    vL = ep.get(); vL2 = ep.get()
    g.e(f"v_lshlrev_b32 v{vL}, 4, v{vLane}")
    g.e(f"s_lshl_b32 s16, s{sWv}, 14")
    g.e(f"v_add_u32 v{vL2}, s16, v{vL}")
    for it in range(4):
        for q in range(4):
            g.e(f"ds_write_b128 v{vL2}, {vr(kvz[it]+4*q,4)} offset:{it*4096+q*1024}")
    g.e("s_waitcnt lgkmcnt(0)")
    g.e("s_barrier")
    g.e(f"s_lshl_b32 s16, s{sWv}, 12")
    g.e(f"v_add_u32 v{vL2}, s16, v{vL}")
    for w in range(4):
        for q in range(4):
            g.e(f"ds_read_b128 {vr(kvz[w]+4*q,4)}, v{vL2} offset:{w*16384+q*1024}")
    g.e("s_waitcnt lgkmcnt(0)")
    for i in range(16):
        g.e(f"v_add_f32 v{kvz[0]+i}, v{kvz[0]+i}, v{kvz[1]+i}")
        g.e(f"v_add_f32 v{kvz[2]+i}, v{kvz[2]+i}, v{kvz[3]+i}")
        g.e(f"v_add_f32 v{kvz[0]+i}, v{kvz[0]+i}, v{kvz[2]+i}")
    g.e(f"s_and_b32 s16, s{sWv}, 1")
    g.e(f"s_lshl_b32 s17, s{sJ}, 1")
    g.e("s_add_u32 s16, s16, s17")
    g.e(f"s_lshl_b32 s17, s{sMt}, 5")
    g.e("s_add_u32 s16, s16, s17")
    g.e(f"s_cmp_ge_u32 s{sWv}, 2")
    g.e("s_cbranch_scc1 k1_z")
    g.e("s_lshl_b32 s16, s16, 12")
    for q in range(4):
        g.e(f"buffer_store_dwordx4 {vr(kvz[0]+4*q,4)}, v{vL}, s[40:43], s16 offen offset:{q*1024}")
    g.e(f"s_branch {done}" + ("_x" if STAMP else ""))
    g.label("k1_z")
    g.e("s_lshl_b32 s16, s16, 7")
    g.e(f"v_lshrrev_b32 v{vL}, 5, v{vLane}")
    g.e(f"v_lshlrev_b32 v{vL}, 6, v{vL}")
    g.e("s_mov_b32 exec_lo, 1")
    g.e("s_mov_b32 exec_hi, 1")
    for q in range(4):
        g.e(f"buffer_store_dwordx4 {vr(kvz[0]+4*q,4)}, v{vL}, s[44:47], s16 offen offset:{q*16}")
    if STAMP:
        g.label(done + "_x")
        stamp(g, 4)
        g.e("s_waitcnt vmcnt(0)")
        stamp(g, 5)
        stamp_flush(g, 8)
    g.label(done)
    g.e("s_endpgm")
    if PF1:
        g.label("k1_pf")
        g.e("s_load_dwordx2 s[48:49], s[0:1], 16")
        g.e("s_load_dwordx4 s[52:55], s[0:1], 32")
        g.e("s_load_dwordx2 s[56:57], s[0:1], 48")
        g.e(f"s_lshl_b32 s16, s2, {PFS+6}")
        g.e(f"v_lshl_add_u32 v4, v{vLane}, {PFS}, s16")
        g.e("s_waitcnt lgkmcnt(0)")
        make_srd(g, 8, 48, 2 * MB)
        make_srd(g, 12, 52, 1024 * 7168)
        make_srd(g, 16, 54, 1024 * 7168)
        make_srd(g, 24, 56, 3584 * 2048)
        SH = PFS
        step = 256 << (SH + 6)
        jobs = [(8, i) for i in range(-(-2 * MB // step))] + [(x, i) for i in range(-(-7168 * 1024 // step)) for x in (12, 16)]
        if os.environ.get("GWOONLY", "1") == "1": jobs = jobs[:2]
        start = CFG['k1'][3] if len(CFG['k1']) > 3 else 12
        per = CFG['k1'][4] if len(CFG['k1']) > 4 else 4
        for b in range(c['nbar'] + 2):
            g.e("s_barrier")
            if b < start: continue
            for _ in range(per):
                if jobs:
                    srd, i = jobs.pop(0)
                    g.e(f"s_mov_b32 s28, {i*step}")
                    g.e(f"buffer_load_dword v5, v4, {sr(srd,4)}, s28 offen")
        assert not jobs
        g.e("s_waitcnt vmcnt(0)")
        g.e("s_endpgm")
    return name, va.n, (256, 320 if PF1 else 256, NS * 24576)

def k2(g):
    name = "k2_att_kernel"
    kernel_begin(g, name)
    done = "k2_done"
    vLane = 2; sWv = 3
    common_entry(g, 256, vLane, sWv, done)
    g.e("s_load_dwordx2 s[6:7], s[0:1], 72")
    sH, sC = 20, 21
    g.e("s_and_b32 s16, s2, 7")
    g.e("s_lshl_b32 s16, s16, 2")
    g.e("s_bfe_u32 s17, s2, 0x20003")
    g.e(f"s_add_u32 s{sH}, s16, s17")
    g.e(f"s_lshr_b32 s{sC}, s2, 5")
    g.e(f"v_lshlrev_b32 v3, 4, v{vLane}")
    g.e(f"v_lshrrev_b32 v4, 5, v{vLane}")
    g.e("v_lshlrev_b32 v4, 6, v4")
    g.e("s_waitcnt lgkmcnt(0)")
    make_srd(g, 8, 6, 2 * MB, WS_KVP)
    make_srd(g, 12, 6, 64 * 1024, WS_ZP)
    make_srd(g, 24, 6, 4 * MB, WS_PQ)
    make_srd(g, 28, 6, 4 * MB, WS_O)
    g.e(f"s_lshl_b32 s16, s{sWv}, 7")
    g.e(f"s_add_u32 s16, s16, s{sH}")
    KV = 16; Z = 80
    for i in range(4):
        g.e(f"s_add_u32 s17, s16, {32*i}")
        g.e("s_lshl_b32 s18, s17, 12")
        g.e("s_lshl_b32 s19, s17, 7")
        for q in range(4):
            g.e(f"buffer_load_dwordx4 {vr(KV+16*i+4*q,4)}, v3, s[8:11], s18 offen offset:{q*1024}")
        for q in range(4):
            g.e(f"buffer_load_dwordx4 {vr(Z+16*i+4*q,4)}, v4, s[12:15], s19 offen offset:{q*16}")
    PQ = 144
    g.e(f"s_lshl_b32 s16, s{sC}, 3")
    g.e(f"s_lshl_b32 s17, s{sWv}, 1")
    g.e("s_add_u32 s16, s16, s17")
    g.e("s_lshl_b32 s16, s16, 16")
    g.e(f"s_lshl_b32 s17, s{sH}, 11")
    g.e("s_add_u32 s22, s16, s17")
    g.e("s_add_u32 s23, s22, 65536")
    for b in range(2):
        for s in range(2):
            g.e(f"buffer_load_dwordx4 {vr(PQ+8*b+4*s,4)}, v3, s[24:27], s{22+b} offen offset:{s*1024}")
    stamp(g, 6)
    g.e("s_waitcnt vmcnt(4)")
    stamp(g, 1)
    for base in (KV, Z):
        for i in range(16):
            g.e(f"v_add_f32 v{base+i}, v{base+i}, v{base+16+i}")
            g.e(f"v_add_f32 v{base+32+i}, v{base+32+i}, v{base+48+i}")
            g.e(f"v_add_f32 v{base+i}, v{base+i}, v{base+32+i}")
    g.e(f"s_lshl_b32 s16, s{sWv}, 13")
    g.e("v_add_u32 v5, s16, v3")
    for k, base in enumerate((KV, Z)):
        for q in range(4):
            g.e(f"ds_write_b128 v5, {vr(base+4*q,4)} offset:{k*4096+q*1024}")
    g.e("s_waitcnt lgkmcnt(0)")
    g.e("s_barrier")
    stamp(g, 2)
    for k, base in enumerate((KV, Z)):
        for w in range(4):
            for q in range(4):
                g.e(f"ds_read_b128 {vr(base+16*w+4*q,4)}, v3 offset:{w*8192+k*4096+q*1024}")
        g.e("s_waitcnt lgkmcnt(0)")
        for i in range(16):
            g.e(f"v_add_f32 v{base+i}, v{base+i}, v{base+16+i}")
            g.e(f"v_add_f32 v{base+32+i}, v{base+32+i}, v{base+48+i}")
            g.e(f"v_add_f32 v{base+i}, v{base+i}, v{base+32+i}")
    KF = 160; ZF = 168
    for i in range(8):
        g.e(f"v_cvt_pk_bf16_f32 v{KF+i}, v{KV+2*i}, v{KV+2*i+1}")
        g.e(f"v_cvt_pk_bf16_f32 v{ZF+i}, v{Z+2*i}, v{Z+2*i+1}")
    NUM = [16, 32]; DEN = [48, 64]
    zero_regs(g, 16, 64)
    g.e("s_waitcnt vmcnt(0)")
    stamp(g, 3)
    for b in range(2):
        for s in range(2):
            g.e(f"v_mfma_f32_32x32x16_bf16 {vr(NUM[b],16)}, {vr(KF+4*s,4)}, {vr(PQ+8*b+4*s,4)}, {vr(NUM[b],16)}")
            g.e(f"v_mfma_f32_32x32x16_bf16 {vr(DEN[b],16)}, {vr(ZF+4*s,4)}, {vr(PQ+8*b+4*s,4)}, {vr(DEN[b],16)}")
    g.e("s_nop 15")
    for b in range(2):
        g.e(f"v_add_f32 v{DEN[b]}, 0x{f2u(1e-6):08x}, v{DEN[b]}")
        g.e(f"v_rcp_f32 v{DEN[b]}, v{DEN[b]}")
    g.e("s_nop 0")
    OUT = 80
    for b in range(2):
        for i in range(16):
            g.e(f"v_mul_f32 v{NUM[b]+i}, v{NUM[b]+i}, v{DEN[b]}")
        for i in range(8):
            g.e(f"v_cvt_pk_bf16_f32 v{OUT+8*b+i}, v{NUM[b]+2*i}, v{NUM[b]+2*i+1}")
        for s in range(2):
            g.e(f"buffer_store_dwordx4 {vr(OUT+8*b+4*s,4)}, v3, s[28:31], s{22+b} offen offset:{s*1024}")
    if STAMP:
        g.label(done + "_x")
        stamp(g, 4)
        g.e("s_waitcnt vmcnt(0)")
        stamp(g, 5)
        stamp_flush(g, 8)
    g.label(done)
    g.e("s_endpgm")
    return name, 176, (256, 256, 32768)

def k35(g, which, NA=8, NS=8):
    is3 = which == 3
    name = "k3_wo_kernel" if is3 else "k5_down_kernel"
    KT = 16 if is3 else 56
    KS = KT * 4
    kernel_begin(g, name)
    done = f"k{which}_done"
    va = Alloc(4)
    vLane = 2; vT = 3; sWv = 3
    common_entry(g, 256, vLane, sWv, done)
    g.e(f"s_load_dwordx2 s[4:5], s[0:1], {16 if is3 else 48}")
    g.e("s_load_dwordx2 s[6:7], s[0:1], 72")
    g.e(f"s_load_dwordx2 s[34:35], s[0:1], {0 if is3 else 56}")
    if is3: g.e("s_load_dwordx4 s[44:47], s[0:1], 32")
    sMt, sNt = 20, 21
    g.e("s_and_b32 s16, s2, 7")
    g.e("s_lshr_b32 s17, s2, 3")
    g.e("s_lshr_b32 s18, s16, 1")
    g.e("s_lshl_b32 s18, s18, 2")
    g.e("s_and_b32 s19, s17, 3")
    g.e(f"s_add_u32 s{sMt}, s18, s19")
    g.e("s_and_b32 s18, s16, 1")
    g.e("s_lshl_b32 s18, s18, 3")
    g.e("s_lshr_b32 s19, s17, 2")
    g.e(f"s_add_u32 s{sNt}, s18, s19")
    RB, CB, D = 1, 2, 4
    acc = [[va.get(16, 4) for cb in range(CB)]]
    res = va.get(16, 4)
    araw = [va.get(4, 4) for _ in range(NA * 4 * RB)]
    bfr = [va.get(4, 4) for _ in range(D * CB)]
    vA = [va.get()]; vBl = va.get(); vBrd = va.get()
    vD = [va.get() for _ in range(2)]
    vH = va.get(); vR = va.get()
    sRbg = 22
    g.e(f"s_lshl_b32 s{sRbg}, s{sMt}, 2")
    g.e(f"s_add_u32 s{sRbg}, s{sRbg}, s{sWv}")
    g.e(f"s_mul_i32 s16, s{sRbg}, {KS*1024}")
    g.e(f"v_lshlrev_b32 v{vA[0]}, 4, v{vLane}")
    g.e(f"v_add_u32 v{vA[0]}, s16, v{vA[0]}")
    g.e(f"s_mul_i32 s16, s{sRbg}, {HSTR}")
    g.e(f"s_lshl_b32 s17, s{sNt}, 12")
    g.e("s_add_u32 s16, s16, s17")
    g.e(f"v_lshlrev_b32 v{vH}, 4, v{vLane}")
    g.e(f"v_add_u32 v{vH}, s16, v{vH}")
    K5T = (not is3) and os.environ.get("GK5T", "1") == "1"
    if K5T:
        vTw = va.get(4); vTr = va.get()
        g.e(f"v_lshrrev_b32 v{vT}, 3, v{vLane}")
        g.e(f"v_lshlrev_b32 v{vR}, 11, v{vT}")
        g.e(f"v_and_b32 v{vTr}, 7, v{vLane}")
        g.e(f"v_lshl_add_u32 v{vR}, v{vTr}, 4, v{vR}")
        g.e(f"v_xor_b32 v{vTr}, v{vTr}, v{vT}")
        g.e(f"v_lshlrev_b32 v{vTr}, 4, v{vTr}")
        g.e(f"v_lshl_add_u32 v{vTr}, v{vT}, 7, v{vTr}")
        g.e(f"s_lshl_b32 s16, s{sWv}, 13")
        g.e(f"v_add_u32 v{vTr}, s16, v{vTr}")
        g.e(f"v_lshrrev_b32 v{vT}, 5, v{vLane}")
        g.e(f"v_and_b32 v{vTw}, 7, v{vLane}")
        g.e(f"v_xor_b32 v{vTw}, v{vTw}, v{vT}")
        g.e(f"v_lshlrev_b32 v{vTw}, 4, v{vTw}")
        g.e(f"v_and_b32 v{vT}, 31, v{vLane}")
        g.e(f"v_lshl_add_u32 v{vTw}, v{vT}, 7, v{vTw}")
        g.e(f"v_add_u32 v{vTw}, s16, v{vTw}")
    else:
        g.e(f"v_and_b32 v{vR}, 31, v{vLane}")
        g.e(f"v_lshlrev_b32 v{vR}, 11, v{vR}")
        g.e(f"v_lshrrev_b32 v{vT}, 5, v{vLane}")
        g.e(f"v_lshl_add_u32 v{vR}, v{vT}, 4, v{vR}")
    g.e(f"s_lshl_b32 s16, s{sRbg}, 16")
    g.e(f"s_lshl_b32 s17, s{sNt}, 7")
    g.e("s_add_u32 s16, s16, s17")
    g.e(f"v_add_u32 v{vR}, s16, v{vR}")
    emit_vBl_std(g, vBl, vLane, vT)
    emit_dma_lane_std(g, vD[0], vLane, vT, 2048, 16)
    g.e(f"s_mul_i32 s16, s{sWv}, {16*2048}")
    g.e(f"s_lshl_b32 s17, s{sNt}, 7")
    g.e("s_add_u32 s16, s16, s17")
    g.e(f"v_add_u32 v{vD[0]}, s16, v{vD[0]}")
    g.e(f"v_add_u32 v{vD[1]}, {8*2048}, v{vD[0]}")
    BLK = os.environ.get("GBLK", "") == str(which)
    if BLK:
        g.e(f"s_mul_i32 s16, s{sNt}, {KT*8192}")
        g.e(f"s_lshl_b32 s17, s{sWv}, 11")
        g.e("s_add_u32 s16, s16, s17")
        g.e(f"v_lshl_add_u32 v{vD[0]}, v{vLane}, 4, s16")
        g.e(f"v_add_u32 v{vD[1]}, 1024, v{vD[0]}")
    dma = [(vD[0], 0, False), (vD[1], 1024, False)]
    sWave = 23
    g.e(f"s_lshl_b32 s{sWave}, s{sWv}, 11")
    g.e("s_waitcnt lgkmcnt(0)")
    if is3: make_srd(g, 8, 6, 4 * MB, WS_O)
    else: make_srd(g, 8, 6, 64 * 224 * 1024, WS_ACT)
    make_srd(g, 12, 4, KT * 64 * 2048)
    make_srd(g, 36, 6, 64 * HSTR, WS_H)
    make_srd(g, 40, 34, 4 * MB)
    def hook_pre(st):
        for j in range(4):
            if is3: st.vmop(f"buffer_load_dwordx4 {vr(res+4*j,4)}, v{vR}, s[40:43], 0 offen offset:{j*32}", ('X', j))
            else: st.vmop(f"buffer_load_dwordx4 {vr(res+4*j,4)}, v{vH}, s[36:39], 0 offen offset:{j*1024}", ('X', j))
    cf = CFG[f'k{which}']
    at = {}
    if is3:
        vC = va.get()
        spare = [va.get(4, 4) for _ in range(9)]
        cdst = spare + araw[0:4] + araw[4:7]
        T0 = cf[3] if len(cf) > 3 else 8
        ctile = [T0] * 9 + [9] * 4 + [10] * 3
        def cs_setup(st, bq):
            n0 = len(g.lines)
            g.e("s_sub_u32 s17, s2, 112")
            g.e("s_cmp_ge_u32 s2, 112")
            g.e("s_cselect_b32 s17, s17, s2")
            g.e("s_cselect_b32 s50, 1, 0")
            g.e("s_cselect_b32 s4, s46, s44")
            g.e("s_cselect_b32 s5, s47, s45")
            g.e("s_lshr_b32 s51, s17, 2")
            g.e("s_and_b32 s52, s2, 3")
            g.e(f"v_lshrrev_b32 v{vC}, 4, v{vLane}")
            g.e(f"v_mul_u32_u24 v{vC}, 7168, v{vC}")
            g.e(f"v_and_b32 v{vT}, 15, v{vLane}")
            g.e(f"v_lshl_add_u32 v{vC}, v{vT}, 4, v{vC}")
            g.e("s_lshl_b32 s19, s52, 2")
            g.e(f"s_add_u32 s19, s19, s{sWv}")
            g.e(f"s_mul_i32 s19, s19, {64*7168}")
            g.e("s_lshl_b32 s18, s51, 8")
            g.e("s_add_u32 s19, s19, s18")
            g.e("s_cmp_ge_u32 s2, 224")
            g.e(f"s_cselect_b32 s19, {OOB}, s19")
            g.e(f"v_add_u32 v{vC}, s19, v{vC}")
            make_srd(g, 56, 4, 1024 * 7168)
            for l in g.lines[n0:]: st.i(l.strip())
            del g.lines[n0:]
        at.setdefault(T0, []).append(cs_setup)
        for i in range(16):
            def ld(st, bq, i=i):
                def f():
                    st.i(f"s_mov_b32 s33, {i*4*7168}")
                    st.vmop(f"buffer_load_dwordx4 {vr(cdst[i],4)}, v{vC}, s[56:59], s33 offen", ('CS', i))
                bq.append(f)
            at.setdefault(ctile[i], []).append(ld)
    c = dict(P=cf[0], R=cf[1], rate=cf[2], hook_pre=hook_pre, at_tile=at, no_final_vm=is3, name=f'k{which}', RB=RB, CB=CB, NB=D*CB, NA=NA, NS=NS, KT=KT, acc=acc, araw=araw, bfr=bfr, vA=vA, vBl=vBl, vBrd=vBrd,
             srdA=8, srdB=12, sregs=(24, 25), stage=8192, tileB=8192 if BLK else 64 * 2048,
             dma=dma, sWave=sWave, swap=[1, 1], bar_off=0,
             b_imm=lambda kk, cb, q: (2 * kk + q) * 1024 + cb * 512)
    gemm_core(g, c)
    ep = Alloc(araw[8])
    t = ep.get(4)
    if is3:
        for j in range(4):
            g.e(f"v_permlane32_swap_b32 v{res+4*j}, v{res+4*j+2}")
            g.e(f"v_permlane32_swap_b32 v{res+4*j+1}, v{res+4*j+3}")
        g.e("s_nop 1")
    a0 = acc[0][0]
    for d in range(16):
        g.e(f"v_lshlrev_b32 v{t}, 16, v{res+d}")
        g.e(f"v_and_b32 v{t+1}, 0xffff0000, v{res+d}")
        g.e(f"v_add_f32 v{a0+2*d}, v{a0+2*d}, v{t}")
        g.e(f"v_add_f32 v{a0+2*d+1}, v{a0+2*d+1}, v{t+1}")
    out = ep.get(16, 4)
    for d in range(16):
        g.e(f"v_cvt_pk_bf16_f32 v{out+d}, v{a0+2*d}, v{a0+2*d+1}")
    if is3:
        for j in range(4):
            g.e(f"buffer_store_dwordx4 {vr(out+4*j,4)}, v{vH}, s[36:39], 0 offen offset:{j*1024}")
        S = ep.get(2, 2); S2 = ep.get(2, 2)
        g.e(f"v_mov_b32 v{S}, 0")
        g.e(f"v_mov_b32 v{S+1}, 0")
        for d in range(16):
            g.e(f"v_lshlrev_b32 v{t}, 16, v{out+d}")
            g.e(f"v_and_b32 v{t+1}, 0xffff0000, v{out+d}")
            g.e(f"v_add_f32 v{S}, v{S}, v{t}")
            g.e(f"v_fma_f32 v{S+1}, v{t}, v{t}, v{S+1}")
            g.e(f"v_add_f32 v{S}, v{S}, v{t+1}")
            g.e(f"v_fma_f32 v{S+1}, v{t+1}, v{t+1}, v{S+1}")
        g.e(f"v_mov_b32 v{S2}, v{S}")
        g.e(f"v_mov_b32 v{S2+1}, v{S+1}")
        g.e("s_nop 1")
        g.e(f"v_permlane32_swap_b32 v{S}, v{S2}")
        g.e(f"v_permlane32_swap_b32 v{S+1}, v{S2+1}")
        g.e("s_nop 1")
        g.e(f"v_add_f32 v{S}, v{S}, v{S2}")
        g.e(f"v_add_f32 v{S+1}, v{S+1}, v{S2+1}")
        make_srd(g, 44, 6, 256 * 1024, WS_ST)
        g.e(f"v_and_b32 v{t}, 31, v{vLane}")
        g.e(f"v_lshlrev_b32 v{t}, 3, v{t}")
        g.e(f"s_lshl_b32 s16, s{sRbg}, 8")
        g.e(f"s_lshl_b32 s17, s{sNt}, 14")
        g.e("s_add_u32 s16, s16, s17")
        g.e("s_mov_b32 exec_hi, 0")
        g.e(f"buffer_store_dwordx2 {vr(S,2)}, v{t}, s[44:47], s16 offen")
        g.e("s_mov_b32 exec_hi, -1")
        idn = ep.get(4, 4); Dc = ep.get(4, 4); vW = ep.get(); R4 = ep.get(4)
        g.e(f"v_and_b32 v{t}, 15, v{vLane}")
        g.e(f"v_and_b32 v{t+1}, 1, v{vLane}")
        g.e(f"v_lshlrev_b32 v{t+1}, 4, v{t+1}")
        g.e(f"v_mov_b32 v{t+2}, 0x3f80")
        g.e(f"v_lshlrev_b32 v{t+1}, v{t+1}, v{t+2}")
        g.e(f"v_lshrrev_b32 v{t}, 1, v{t}")
        for j in range(4):
            g.e(f"v_cmp_eq_u32 vcc, {j}, v{t}")
            g.e(f"v_cndmask_b32 v{idn+j}, 0, v{t+1}, vcc")
        g.e(f"v_and_b32 v{vW}, 15, v{vLane}")
        g.e(f"v_lshlrev_b32 v{vW}, 5, v{vW}")
        g.e(f"v_bfe_u32 v{t}, v{vLane}, 4, 1")
        g.e(f"v_lshl_add_u32 v{vW}, v{t}, 4, v{vW}")
        g.e(f"s_lshl_b32 s16, s{sWv}, 9")
        g.e(f"s_add_u32 s16, s16, {NS*8192}")
        g.e(f"v_add_u32 v{vW}, s16, v{vW}")
        make_srd(g, 44, 6, 7168 * 16, WS_S)
        for i in range(16):
            g.e(f"s_waitcnt vmcnt({5 + 15 - i})")
            g.e(f"v_mfma_f32_16x16x32_bf16 {vr(Dc,4)}, {vr(idn,4)}, {vr(cdst[i],4)}, {vr(Dc,4) if i else 0}")
        g.e("s_nop 15")
        g.e("s_mov_b32 exec_hi, 0")
        g.e(f"ds_write_b128 v{vW}, {vr(Dc,4)}")
        g.e("s_mov_b32 exec_hi, -1")
        g.e("s_waitcnt lgkmcnt(0)")
        g.e("s_barrier")
        g.e(f"s_cmp_ge_u32 s{sWv}, 2")
        g.e(f"s_cbranch_scc1 {done}" + ("_x" if STAMP else ""))
        g.e(f"v_lshlrev_b32 v{t}, 2, v0")
        g.e(f"v_add_u32 v{t}, {NS*8192}, v{t}")
        for w in range(4): g.e(f"ds_read_b32 v{R4+w}, v{t} offset:{w*512}")
        g.e("s_mul_i32 s19, s50, 3584")
        g.e("s_lshl_b32 s18, s51, 7")
        g.e("s_add_u32 s19, s19, s18")
        g.e("s_lshl_b32 s19, s19, 4")
        g.e("s_lshl_b32 s18, s52, 2")
        g.e("s_add_u32 s19, s19, s18")
        g.e("s_cmp_ge_u32 s2, 224")
        g.e(f"s_cbranch_scc1 {done}" + ("_x" if STAMP else ""))
        g.e(f"v_lshlrev_b32 v{t}, 4, v0")
        g.e("s_waitcnt lgkmcnt(0)")
        g.e(f"v_add_f32 v{R4}, v{R4}, v{R4+1}")
        g.e(f"v_add_f32 v{R4+2}, v{R4+2}, v{R4+3}")
        g.e(f"v_add_f32 v{R4}, v{R4}, v{R4+2}")
        g.e(f"buffer_store_dword v{R4}, v{t}, s[44:47], s19 offen")
    else:
        g.e("s_nop 1")
        for j in range(4):
            g.e(f"v_permlane32_swap_b32 v{out+4*j}, v{out+4*j+2}")
            g.e(f"v_permlane32_swap_b32 v{out+4*j+1}, v{out+4*j+3}")
        if K5T:
            for j in range(4):
                if j: g.e(f"v_xor_b32 v{vTw+j}, {j*32}, v{vTw}")
                g.e(f"ds_write_b128 v{vTw+j}, {vr(out+4*j,4)}")
            g.e("s_waitcnt lgkmcnt(0)")
            for j in range(4):
                g.e(f"ds_read_b128 {vr(out+4*j,4)}, v{vTr} offset:{j*1024}")
            for j in range(4):
                g.e(f"s_mov_b32 s16, {j*16384}")
                g.e(f"s_waitcnt lgkmcnt({3-j})")
                g.e(f"buffer_store_dwordx4 {vr(out+4*j,4)}, v{vR}, s[40:43], s16 offen")
        else:
            g.e("s_nop 1")
            for j in range(4):
                g.e(f"buffer_store_dwordx4 {vr(out+4*j,4)}, v{vR}, s[40:43], 0 offen offset:{j*32}")
    if STAMP:
        g.label(done + "_x")
        stamp(g, 4)
        g.e("s_waitcnt vmcnt(0)")
        stamp(g, 5)
        stamp_flush(g, 8)
    g.label(done)
    g.e("s_endpgm")
    return name, va.n, (256, 256, NS * 8192 + (2048 if is3 else 0))

K5S = os.environ.get('GK5S', '1') == '1'
def k4(g, NA=2, NS=5):
    name = "k4_ffn_kernel"
    kernel_begin(g, name)
    done = "k4_done"
    va = Alloc(4)
    vLane = 2; vT = 3; sWv = 3
    UOFF = 14464; STAGE = 28800
    NA = CFG['k4'][3] if len(CFG['k4']) > 3 else NA
    common_entry(g, 256, vLane, sWv, done)
    g.e("s_load_dwordx4 s[36:39], s[0:1], 32")
    g.e("s_load_dwordx2 s[6:7], s[0:1], 72")
    if PF4: g.e("s_load_dwordx2 s[48:49], s[0:1], 48")
    sMt, sNt = 20, 21
    g.e("s_and_b32 s16, s2, 7")
    g.e("s_lshr_b32 s17, s2, 3")
    g.e("s_and_b32 s18, s16, 1")
    g.e("s_lshl_b32 s18, s18, 2")
    g.e("s_and_b32 s19, s17, 3")
    g.e(f"s_add_u32 s{sMt}, s18, s19")
    g.e("s_lshr_b32 s18, s16, 1")
    g.e("s_lshl_b32 s18, s18, 3")
    g.e("s_lshr_b32 s19, s17, 2")
    g.e(f"s_add_u32 s{sNt}, s18, s19")
    RB, CB, D = 1, 7, 1
    acc = [[va.get(16, 4) for cb in range(CB)]]
    araw = [va.get(4, 4) for _ in range(NA * 4 * RB)]
    bfr = [va.get(4, 4) for _ in range(D * CB)]
    st0 = va.get(16, 4)
    Sv4 = va.get(28, 4)
    tmp = [st0 + i for i in range(3)]
    vA = [va.get()]; vBl = va.get(); vBrd = va.get()
    vD = [va.get() for _ in range(4)]
    vC1 = va.get(); vC2 = va.get(); vI2 = va.get(); vS = va.get(); vSa = va.get()
    sRbg = 22
    g.e(f"s_lshl_b32 s{sRbg}, s{sMt}, 3")
    g.e(f"s_add_u32 s{sRbg}, s{sRbg}, s{sWv}")
    g.e(f"s_mul_i32 s16, s{sRbg}, {HSTR}")
    g.e(f"v_lshlrev_b32 v{vA[0]}, 4, v{vLane}")
    g.e(f"v_add_u32 v{vA[0]}, s16, v{vA[0]}")
    g.e(f"v_lshrrev_b32 v{vT}, 5, v{vLane}")
    g.e(f"v_bfe_u32 v{vBl}, v{vLane}, 2, 2")
    g.e(f"v_lshl_add_u32 v{vT}, v{vT}, 2, v{vBl}")
    g.e(f"v_mul_u32_u24 v{vBl}, 224, v{vT}")
    g.e(f"v_bfe_u32 v{vT}, v{vLane}, 4, 1")
    g.e(f"v_mul_u32_u24 v{vT}, {UOFF}, v{vT}")
    g.e(f"v_add_u32 v{vBl}, v{vBl}, v{vT}")
    g.e(f"v_and_b32 v{vT}, 3, v{vLane}")
    g.e(f"v_lshl_add_u32 v{vBl}, v{vT}, 3, v{vBl}")
    g.e(f"s_lshr_b32 s16, s{sWv}, 1")
    g.e(f"s_mul_i32 s17, s16, {16*7168}")
    g.e(f"s_mul_i32 s18, s{sNt}, 224")
    g.e("s_add_u32 s17, s17, s18")
    for i in range(4):
        g.e(f"v_add_u32 v{tmp[0]}, {64*i}, v{vLane}")
        g.e(f"v_mul_u32_u24 v{tmp[1]}, 4682, v{tmp[0]}")
        g.e(f"v_lshrrev_b32 v{tmp[1]}, 16, v{tmp[1]}")
        g.e(f"v_mul_u32_u24 v{tmp[2]}, 14, v{tmp[1]}")
        g.e(f"v_sub_u32 v{tmp[2]}, v{tmp[0]}, v{tmp[2]}")
        g.e(f"v_mul_u32_u24 v{tmp[1]}, 7168, v{tmp[1]}")
        g.e(f"v_lshl_add_u32 v{tmp[1]}, v{tmp[2]}, 4, v{tmp[1]}")
        g.e(f"v_add_u32 v{vD[i]}, s17, v{tmp[1]}")
    dma = [(vD[i], i * 1024, i == 3) for i in range(4)]
    sWave = 23
    g.e(f"s_mul_i32 s{sWave}, s16, 3584")
    g.e(f"s_and_b32 s18, s{sWv}, 1")
    g.e(f"s_mul_i32 s19, s18, {UOFF}")
    g.e(f"s_add_u32 s{sWave}, s{sWave}, s19")
    g.e("s_waitcnt lgkmcnt(0)")
    g.e("s_cmp_eq_u32 s18, 0")
    g.e("s_cselect_b32 s4, s36, s38")
    g.e("s_cselect_b32 s5, s37, s39")
    make_srd(g, 8, 6, 64 * HSTR, WS_H)
    make_srd(g, 12, 4, 1024 * 7168)
    at = {}
    def late_setup(st):
        n0 = len(g.lines)
        make_srd(g, 40, 6, 256 * 1024, WS_ST)
        make_srd(g, 44, 6, 64 * 224 * 1024, WS_ACT)
        g.e(f"v_and_b32 v{vS}, 31, v{vLane}")
        g.e(f"v_lshlrev_b32 v{vS}, 3, v{vS}")
        g.e(f"v_lshrrev_b32 v{vT}, 5, v{vLane}")
        g.e(f"v_lshl_add_u32 v{vS}, v{vT}, 14, v{vS}")
        g.e(f"s_lshl_b32 s16, s{sRbg}, 8")
        g.e(f"v_add_u32 v{vS}, s16, v{vS}")
        make_srd(g, 56, 6, 7168 * 16, WS_S)
        g.e(f"v_bfe_u32 v{vT}, v{vLane}, 4, 1")
        g.e(f"v_mul_u32_u24 v{vT}, {14336*4}, v{vT}")
        g.e(f"v_and_b32 v{vSa}, 15, v{vLane}")
        g.e(f"v_lshl_add_u32 v{vSa}, v{vSa}, 4, v{vT}")
        g.e(f"s_mul_i32 s16, s{sNt}, {448*4}")
        g.e(f"v_add_u32 v{vSa}, s16, v{vSa}")
        if PF4:
            make_srd(g, 52, 48, 3584 * 2048)
            g.e("s_lshl_b32 s16, s2, 12")
            g.e(f"v_lshl_add_u32 v{vP}, v0, 3, s16")
        for l in g.lines[n0:]: st.i(l.strip())
        del g.lines[n0:]
    if PF4:
        vP = va.get(); vJ = va.get()
        for it in range(8):
            def pf(st, bq, it=it):
                def f():
                    st.i(f"s_mov_b32 s33, {it*MB}")
                    st.vmop(f"buffer_load_dword v{vJ}, v{vP}, s[52:55], s33 offen", ('P', it))
                bq.append(f)
            at.setdefault(2 + it, []).append(pf)
    if K5S:
        def fill(st, bq):
            F = Sv4
            st.i("s_add_u32 s28, s6, %d" % WS_X)
            st.i("s_addc_u32 s29, s7, 0")
            st.i("s_mov_b32 s30, %d" % (4 * MB))
            st.i("s_mov_b32 s31, 0x00020000")
            for i in range(4): st.i(f"v_mov_b32 v{F+i}, -1")
            XB = True
            st.i(f"s_lshl_b32 s33, s2, {14 if XB else 15}")
            st.i(f"v_lshrrev_b32 v{F+4}, 6, v0")
            st.i(f"v_lshlrev_b32 v{F+4}, {11 if XB else 12}, v{F+4}")
            st.i(f"v_lshl_add_u32 v{F+4}, v{vLane}, 4, v{F+4}")
            st.i(f"v_add_u32 v{F+4}, s33, v{F+4}")
            for i in range(2 if XB else 4):
                bq.append(lambda i=i: st.vmop(f"buffer_store_dwordx4 {vr(F,4)}, v{F+4}, s[28:31], 0 offen offset:{i*1024}" + ("" if "4" in GSTK else " sc1"), ('F', i)))
        at.setdefault(10, []).append(fill)
    def ld_stats(st, bq):
        for j in range(8):
            def f(j=j):
                st.i(f"s_mov_b32 s33, {j*32768}")
                st.vmop(f"buffer_load_dwordx2 {vr(st0+2*j,2)}, v{vS}, s[40:43], s33 offen", ('S', j))
            bq.append(f)
        for cb in range(CB):
            bq.append(lambda cb=cb: st.vmop(f"buffer_load_dwordx4 {vr(Sv4+4*cb,4)}, v{vSa}, s[56:59], 0 offen offset:{cb*256}", ('C', cb)))
    at.setdefault(1, []).append(ld_stats)
    C1 = -2.0 * 0.7978845608028654 * LOG2E
    C2 = C1 * 0.044715
    def corr(st, bq):
        st.need('vm', [('S', j) for j in range(8)] + [('C', cb) for cb in range(CB)])
        for j in (8, 4, 2):
            for i in range(j):
                st.i(f"v_add_f32 v{st0+i}, v{st0+i}, v{st0+j+i}")
        st.i(f"v_mov_b32 v{st0+2}, v{st0}")
        st.i(f"v_mov_b32 v{st0+3}, v{st0+1}")
        st.i("s_nop 1")
        st.i(f"v_permlane32_swap_b32 v{st0}, v{st0+2}")
        st.i(f"v_permlane32_swap_b32 v{st0+1}, v{st0+3}")
        st.i("s_nop 1")
        st.i(f"v_add_f32 v{st0}, v{st0}, v{st0+2}")
        st.i(f"v_add_f32 v{st0+1}, v{st0+1}, v{st0+3}")
        st.i(f"v_mul_f32 v{st0}, 0x{f2u(-1/1024):08x}, v{st0}")
        st.i(f"v_mul_f32 v{st0+1}, 0x{f2u(1/1024):08x}, v{st0+1}")
        st.i(f"v_fma_f32 v{st0+1}, -v{st0}, v{st0}, v{st0+1}")
        st.i(f"v_max_f32 v{st0+1}, 0, v{st0+1}")
        st.i(f"v_add_f32 v{vI2}, 0x{f2u(1e-5):08x}, v{st0+1}")
        st.i(f"v_rsq_f32 v{st0+1}, v{vI2}")
        Bf = st0 + 4; Af = [st0 + 8, st0 + 12]
        st.i(f"v_cmp_gt_u32 vcc, 32, v{vLane}")
        st.i(f"v_cndmask_b32 v{st0}, 0, v{st0}, vcc")
        st.i(f"v_cvt_pk_bf16_f32 v{Bf+1}, v{st0}, 0")
        st.i(f"v_lshlrev_b32 v{st0+2}, 16, v{Bf+1}")
        st.i(f"v_sub_f32 v{st0+2}, v{st0}, v{st0+2}")
        st.i(f"v_cvt_pk_bf16_f32 v{Bf}, v{st0}, v{st0+2}")
        st.i(f"v_mov_b32 v{Bf+2}, 0")
        st.i(f"v_mov_b32 v{Bf+3}, 0")
        st.i(f"v_mul_f32 v{vC1}, 0x{f2u(C1):08x}, v{st0+1}")
        st.i(f"v_mul_f32 v{vC2}, v{st0+1}, v{st0+1}")
        st.i(f"v_mul_f32 v{vC2}, v{vC2}, v{st0+1}")
        st.i(f"v_mul_f32 v{vC2}, 0x{f2u(C2):08x}, v{vC2}")
        for a_ in Af:
            st.i(f"v_mov_b32 v{a_+2}, 0")
            st.i(f"v_mov_b32 v{a_+3}, 0")
        for cb in range(CB):
            a_ = Af[cb & 1]
            S_ = Sv4 + 4 * cb
            st.i(f"v_add_f32 v{S_}, v{S_}, v{S_+1}")
            st.i(f"v_add_f32 v{S_+2}, v{S_+2}, v{S_+3}")
            st.i(f"v_add_f32 v{S_}, v{S_}, v{S_+2}")
            st.i(f"v_cvt_pk_bf16_f32 v{a_}, v{S_}, v{S_}")
            st.i(f"v_and_b32 v{st0+2}, 0xffff0000, v{a_}")
            st.i(f"v_sub_f32 v{st0+2}, v{S_}, v{st0+2}")
            st.i(f"v_cvt_pk_bf16_f32 v{a_+1}, v{st0+2}, 0")
            st.i("s_nop 1")
            st.i(f"v_mfma_f32_32x32x16_bf16 {vr(acc[0][cb],16)}, {vr(a_,4)}, {vr(Bf,4)}, {vr(acc[0][cb],16)}")
    at.setdefault(8, []).append(corr)
    c = dict(P=CFG['k4'][0], R=CFG['k4'][1], rate=CFG['k4'][2], name='k4', RB=RB, CB=CB, NB=D*CB, NA=NA, NS=NS, KT=16, acc=acc, araw=araw, bfr=bfr, vA=vA, vBl=vBl, vBrd=vBrd,
             hook_pre=late_setup, at_tile=at,
             srdA=8, srdB=12, sregs=(24, 25), stage=STAGE, tileB=64 * 7168,
             dma=dma, sWave=sWave, swap=[1] * 7,
             b_imm=lambda kk, cb, q: (16 * kk + 8 * q) * 224 + cb * 32)
    gemm_core(g, c)
    ep = Alloc(araw[0])
    T = ep.get(8); O = [ep.get(4, 4) for _ in range(2)]
    vO = ep.get()
    g.e(f"s_mul_i32 s18, s{sRbg}, 224")
    g.e(f"s_mul_i32 s19, s{sNt}, 7")
    g.e("s_add_u32 s18, s18, s19")
    g.e("s_lshl_b32 s18, s18, 10")
    g.e(f"v_lshlrev_b32 v{vO}, 4, v{vLane}")
    g.e(f"v_add_u32 v{vO}, s18, v{vO}")
    g.e("s_mov_b32 s19, 4096")
    for cb in range(CB):
        a = acc[0][cb]
        for i in range(8): g.e(f"v_mul_f32 v{T+i}, v{a+i}, v{a+i}")
        for i in range(8): g.e(f"v_fma_f32 v{T+i}, v{T+i}, v{vC2}, v{vC1}")
        for i in range(8): g.e(f"v_mul_f32 v{T+i}, v{T+i}, v{a+i}")
        for i in range(8): g.e(f"v_exp_f32 v{T+i}, v{T+i}")
        for i in range(8): g.e(f"v_mul_f32 v{a+i}, v{a+i}, v{a+8+i}")
        for i in range(8): g.e(f"v_fma_f32 v{T+i}, v{T+i}, v{vI2}, v{vI2}")
        for i in range(8): g.e(f"v_rcp_f32 v{T+i}, v{T+i}")
        g.e("s_nop 0")
        for i in range(8): g.e(f"v_mul_f32 v{a+i}, v{a+i}, v{T+i}")
        o = O[cb & 1]
        for i in range(4): g.e(f"v_cvt_pk_bf16_f32 v{o+i}, v{a+2*i}, v{a+2*i+1}")
        if cb < 4: g.e(f"buffer_store_dwordx4 {vr(o,4)}, v{vO}, s[44:47], 0 offen offset:{cb*1024}")
        else: g.e(f"buffer_store_dwordx4 {vr(o,4)}, v{vO}, s[44:47], s19 offen offset:{(cb-4)*1024}")
    if STAMP:
        g.label(done + "_x")
        stamp(g, 4)
        g.e("s_waitcnt vmcnt(0)")
        stamp(g, 5)
        stamp_flush(g, 8)
    g.label(done)
    g.e("s_endpgm")
    return name, va.n, (256, 512, NS * STAGE)

WS_X = 48 * MB
def k5s(g, NA=14, NS=9, S=8):
    name = "k5_down_kernel"
    KT = 28
    kernel_begin(g, name)
    done = "k5_done"
    va = Alloc(4)
    vLane = 2; vT = 3; sWv = 3
    cf = CFG['k5']
    if len(cf) > 3: NA = cf[3]
    if len(cf) > 4: NS = cf[4]
    if len(cf) > 5: S = cf[5]
    assert S <= NS - 1 and S < NA
    LS, LK, TLO = [int(x) for x in os.environ.get("GK5L", "8,3,0").split(",")]
    common_entry(g, 256, vLane, sWv, done)
    g.e("s_load_dwordx2 s[4:5], s[0:1], 48")
    g.e("s_load_dwordx2 s[6:7], s[0:1], 72")
    g.e("s_load_dwordx2 s[34:35], s[0:1], 56")
    sMt, sNt, sKh = 20, 21, 26
    g.e("s_and_b32 s16, s2, 7")
    g.e("s_lshr_b32 s17, s2, 3")
    g.e(f"s_and_b32 s{sKh}, s16, 1")
    g.e("s_bfe_u32 s18, s16, 0x10001")
    g.e("s_lshl_b32 s18, s18, 2")
    g.e("s_and_b32 s19, s17, 3")
    g.e(f"s_add_u32 s{sNt}, s18, s19")
    g.e("s_lshr_b32 s18, s16, 2")
    g.e("s_lshl_b32 s18, s18, 3")
    g.e("s_lshr_b32 s19, s17, 2")
    g.e(f"s_add_u32 s{sMt}, s18, s19")
    RB, CB, NB = 1, 4, 8
    acc = [[va.get(16, 4) for cb in range(CB)]]
    res = va.get(16, 4)
    araw = [4 * i for i in range(NA * 4)]
    bfr = [va.get(4, 4) for _ in range(NB)]
    vA = [va.get()]; vBl = va.get(); vBrd = va.get()
    vD = [va.get() for _ in range(4)]
    vH = va.get(); vX = va.get(); vR = va.get(); vTw = va.get(4); vTr = va.get()
    Sn = va.get(16, 4)
    t = va.get(4, 2); m = va.get()
    sRbg = 22; sCt = 27
    g.e(f"s_lshl_b32 s{sRbg}, s{sMt}, 2")
    g.e(f"s_add_u32 s{sRbg}, s{sRbg}, s{sWv}")
    g.e(f"s_lshl_b32 s{sCt}, s{sNt}, 1")
    g.e(f"s_add_u32 s{sCt}, s{sCt}, s{sKh}")
    g.e(f"s_mul_i32 s16, s{sRbg}, {224*1024}")
    g.e(f"s_mul_i32 s17, s{sKh}, {112*1024}")
    g.e("s_add_u32 s16, s16, s17")
    g.e(f"v_lshlrev_b32 v{vX}, 4, v{vLane}")
    g.e(f"v_add_u32 v{vA[0]}, s16, v{vX}")
    emit_vBl_std(g, vBl, vLane, vT)
    emit_dma_lane_std(g, vD[0], vLane, vT, 2048, 16)
    g.e(f"s_mul_i32 s16, s{sWv}, {16*2048}")
    g.e(f"s_mul_i32 s18, s{sKh}, {1792*2048}")
    g.e("s_add_u32 s16, s16, s18")
    g.e(f"s_lshl_b32 s17, s{sCt}, 7")
    g.e("s_add_u32 s18, s16, s17")
    g.e("s_xor_b32 s17, s17, 128")
    g.e("s_add_u32 s19, s16, s17")
    g.e(f"v_add_u32 v{vD[2]}, s19, v{vD[0]}")
    g.e(f"v_add_u32 v{vD[0]}, s18, v{vD[0]}")
    g.e(f"v_add_u32 v{vD[1]}, {8*2048}, v{vD[0]}")
    g.e(f"v_add_u32 v{vD[3]}, {8*2048}, v{vD[2]}")
    dma = [(vD[2], 8192, False), (vD[3], 9216, False), (vD[0], 0, False), (vD[1], 1024, False)]
    sWave = 23
    g.e(f"s_lshl_b32 s{sWave}, s{sWv}, 11")
    g.e("s_waitcnt lgkmcnt(0)")
    make_srd(g, 8, 6, 64 * 224 * 1024, WS_ACT)
    make_srd(g, 12, 4, 3584 * 2048)
    KTT = KT + S
    free = [s_ for s_ in range(NS) if s_ not in ((KTT - 1) % NS, (KTT - 2) % NS)][0]
    def hook_pre(st):
        n0 = len(g.lines)
        make_srd(g, 36, 6, 64 * HSTR, WS_H)
        make_srd(g, 40, 34, 4 * MB)
        make_srd(g, 44, 6, 4 * MB, WS_X)
        g.e(f"s_mul_i32 s16, s{sRbg}, {HSTR}")
        g.e(f"s_lshl_b32 s17, s{sCt}, 12")
        g.e("s_add_u32 s16, s16, s17")
        g.e(f"v_add_u32 v{vH}, s16, v{vX}")
        g.e(f"s_lshl_b32 s28, s{sMt}, 4")
        g.e(f"s_add_u32 s28, s28, s{sCt}")
        g.e("s_lshl_b32 s28, s28, 2")
        g.e(f"s_add_u32 s28, s28, s{sWv}")
        g.e("s_lshl_b32 s28, s28, 12")
        g.e(f"s_xor_b32 s29, s28, {4*4096}")
        g.e(f"v_lshrrev_b32 v{vT}, 3, v{vLane}")
        g.e(f"v_lshlrev_b32 v{vR}, 11, v{vT}")
        g.e(f"v_and_b32 v{vTr}, 7, v{vLane}")
        g.e(f"v_lshl_add_u32 v{vR}, v{vTr}, 4, v{vR}")
        g.e(f"v_xor_b32 v{vTr}, v{vTr}, v{vT}")
        g.e(f"v_lshlrev_b32 v{vTr}, 4, v{vTr}")
        g.e(f"v_lshl_add_u32 v{vTr}, v{vT}, 7, v{vTr}")
        g.e(f"s_lshl_b32 s16, s{sWv}, 12")
        g.e(f"s_add_u32 s16, s16, {free*16384}")
        g.e(f"v_add_u32 v{vTr}, s16, v{vTr}")
        g.e(f"v_lshrrev_b32 v{vT}, 5, v{vLane}")
        g.e(f"v_and_b32 v{vTw}, 7, v{vLane}")
        g.e(f"v_xor_b32 v{vTw}, v{vTw}, v{vT}")
        g.e(f"v_lshlrev_b32 v{vTw}, 4, v{vTw}")
        g.e(f"v_and_b32 v{vT}, 31, v{vLane}")
        g.e(f"v_lshl_add_u32 v{vTw}, v{vT}, 7, v{vTw}")
        g.e(f"v_add_u32 v{vTw}, s16, v{vTw}")
        for j in range(1, 4): g.e(f"v_xor_b32 v{vTw+j}, {j*32}, v{vTw}")
        g.e(f"s_lshl_b32 s16, s{sRbg}, 16")
        g.e(f"s_lshl_b32 s17, s{sCt}, 7")
        g.e("s_add_u32 s16, s16, s17")
        g.e(f"v_add_u32 v{vR}, s16, v{vR}")
        for l in g.lines[n0:]: st.i(l.strip())
        del g.lines[n0:]
        for j in range(4):
            st.vmop(f"buffer_load_dwordx4 {vr(res+4*j,4)}, v{vH}, s[36:39], 0 offen offset:{j*1024}", ('X', j))
    sfx = "" if "5" in GSTK else " sc1"
    a2 = acc[0][2]
    def send(st):
        for j in range(4):
            for i in range(4): st.i(f"v_cvt_pk_bf16_f32 v{Sn+4*j+i}, v{a2+8*j+2*i}, v{a2+8*j+2*i+1}")
            st.vmop(f"buffer_store_dwordx4 {vr(Sn+4*j,4)}, v{vX}, s[44:47], s28 offen offset:{j*1024}" + sfx, ('W', j))
    psteps = [int(x) for x in os.environ.get("GK5P", "12,20,28").split(",") if x and int(x) < 4 * S - 1]
    Pn = [va.get(16, 4) for _ in range(len(psteps) + 1)]
    def poll(st, k):
        for j in range(4):
            st.vmop(f"buffer_load_dwordx4 {vr(Pn[k]+4*j,4)}, v{vX}, s[44:47], s29 offen offset:{j*1024} sc1", ('Q', k, j))
    PRE = S >= 3
    def slot_hook(st, t_, kk, cb):
        if PRE and t_ in (1, 2) and cb in (2, 3):
            if (t_, kk, cb) == (1, 0, 2): st.need('vm', [('X', j) for j in range(4)])
            d = ((t_ - 1) * 4 + kk) * 2 + cb - 2
            st.i(f"v_lshlrev_b32 v{acc[0][0]+2*d}, 16, v{res+d}")
            st.i(f"v_and_b32 v{acc[0][0]+2*d+1}, 0xffff0000, v{res+d}")
        if cb != 0 or t_ < KT: return
        s_ = (t_ - KT) * 4 + kk - 1
        if s_ == 0:
            st.i("s_nop 15"); st.i("s_nop 3")
            send(st)
        if s_ in psteps: poll(st, psteps.index(s_))
    c = dict(P=cf[0], R=cf[1], rate=cf[2], hook_pre=hook_pre, slot_hook=slot_hook, no_final_vm=True, name='k5', RB=RB, CB=CB, NB=NB, NA=NA, NS=NS, KT=KT, acc=acc, araw=araw, bfr=bfr, vA=vA, vBl=vBl, vBrd=vBrd,
             srdA=8, srdB=12, sregs=(24, 25), stage=16384, tileB=64 * 2048, a_in_acc=True, lag=[S, S, 0, 0], dlag=[0, 0, S, S], preinit=(0, 1) if PRE else (),
             dlook=[LS, LS, LK, LK], Tl=KT - (NA - S) + TLO,
             dma=dma, sWave=sWave, swap=[1] * 4, bar_off=int(os.environ.get("GK5BO", "0")),
             b_imm=lambda kk, cb, q: (cb >> 1) * 8192 + (2 * kk + q) * 1024 + (cb & 1) * 512)
    gemm_core(g, c)
    st = Stream()
    if S == 0: send(st)
    NP = len(psteps)
    poll(st, NP)
    for it in st.items: g.e(it[1])
    a0 = acc[0][0]
    def add_bf16(src):
        for d in range(16):
            u = t + 2 * (d & 1)
            g.e(f"v_lshlrev_b32 v{u}, 16, v{src+d}")
            g.e(f"v_and_b32 v{u+1}, 0xffff0000, v{src+d}")
            g.e(f"v_pk_add_f32 {vr(a0+2*d,2)}, {vr(a0+2*d,2)}, {vr(u,2)}")
    if not PRE: add_bf16(res)
    def check(k, later):
        for j in range(4):
            g.e(f"s_waitcnt vmcnt({later + 3 - j})")
            p = Pn[k] + 4 * j
            if j == 0:
                g.e(f"v_max3_u32 v{m}, v{p}, v{p+1}, v{p+2}")
                g.e(f"v_max_u32 v{m}, v{m}, v{p+3}")
            else:
                g.e(f"v_max3_u32 v{m}, v{m}, v{p}, v{p+1}")
                g.e(f"v_max3_u32 v{m}, v{m}, v{p+2}, v{p+3}")
        g.e(f"v_cmp_eq_u32 vcc, -1, v{m}")
        g.e(f"s_cbranch_vccz k5_got{k}")
    g.e("s_mov_b32 s30, 4000")
    for k in range(NP):
        if STAMP: g.e("s_sub_u32 s30, s30, 1")
        check(k, 4 * (NP - k))
    g.label("k5_poll")
    check(NP, 0)
    st = Stream(); poll(st, NP)
    for it in st.items: g.e(it[1])
    g.e("s_sub_u32 s30, s30, 1")
    g.e("s_cmp_lg_u32 s30, 0")
    g.e("s_cbranch_scc1 k5_poll")
    g.e("s_waitcnt vmcnt(0)")
    for k in range(NP, -1, -1):
        g.label(f"k5_got{k}")
        add_bf16(Pn[k])
        if k: g.e("s_branch k5_fin")
    g.label("k5_fin")
    if STAMP:
        g.e("s_memtime s[72:73]"); g.e("s_waitcnt lgkmcnt(0)")
        g.e("s_sub_u32 s74, 4000, s30"); g.e("s_add_u32 s74, s74, s60")
    out = Sn
    for d in range(16):
        g.e(f"v_cvt_pk_bf16_f32 v{out+d}, v{a0+2*d}, v{a0+2*d+1}")
    g.e("s_nop 1")
    for j in range(4):
        g.e(f"v_permlane32_swap_b32 v{out+4*j}, v{out+4*j+2}")
        g.e(f"v_permlane32_swap_b32 v{out+4*j+1}, v{out+4*j+3}")
    for j in range(4):
        g.e(f"ds_write_b128 v{vTw+j}, {vr(out+4*j,4)}")
    g.e("s_waitcnt lgkmcnt(0)")
    for j in range(4):
        g.e(f"ds_read_b128 {vr(out+4*j,4)}, v{vTr} offset:{j*1024}")
    for j in range(4):
        g.e(f"s_mov_b32 s16, {j*16384}")
        g.e(f"s_waitcnt lgkmcnt({3-j})")
        g.e(f"buffer_store_dwordx4 {vr(out+4*j,4)}, v{vR}, s[40:43], s16 offen")
    if STAMP:
        stamp(g, 4)
        g.e("s_waitcnt vmcnt(0)")
        stamp(g, 5)
        stamp_flush(g, 8)
    g.label(done)
    g.e("s_endpgm")
    return name, (va.n, NA * 16), (256, 256, NS * 16384)

def main(out):
    g = G()
    ks = []
    ks.append(k0(g))
    ks.append(k1(g))
    ks.append(k2(g))
    ks.append(k35(g, 3))
    ks.append(k4(g))
    ks.append(k5s(g) if K5S else k35(g, 5))
    head = []
    for name, nv, (grid, blk, lds) in ks:
        head.append(f"; @launch kernel={name} grid=({grid},1,1) block=({blk},1,1) lds={lds}")
    head.append('.amdgcn_target "amdgcn-amd-amdhsa--gfx950"')
    head.append(".text")
    txt = "\n".join(head) + "\n" + g.text()
    txt += '.section .rodata,"a"\n'
    for name, nv, _ in ks:
        txt += ".p2align 6\n" + kernel_desc(name, nv)
    open(out, "w").write(txt)
    for name, nv, l in ks: print(name, "vgpr", nv, l)

if __name__ == "__main__":
    main(sys.argv[1] if len(sys.argv) > 1 else f"cdna_kernels/{NAME}.s")
```
